```python
import torch

def _softmax(x, axis=-1):
    return torch.softmax(x, dim=axis)
def _gelu(x):
    return torch.nn.functional.gelu(x, approximate="tanh")
def _silu(x):
    return torch.nn.functional.silu(x)
def _sigmoid(x):
    return torch.sigmoid(x)
def _layernorm(x, axis=-1, eps=1e-5):
    m = x.mean(dim=axis, keepdim=True)
    v = x.var(dim=axis, keepdim=True, unbiased=False)
    return (x - m) / torch.sqrt(v + eps)
def _scatter_add(tgt, idx, src, axis=0):
    return tgt.clone().index_add_(axis, idx, src)
def _segment_sum(src, seg, n):
    out = torch.zeros((n,) + src.shape[1:], dtype=src.dtype)
    return out.index_add_(0, seg, src)
def _pad(x, pw):
    flat = tuple(v for pair in reversed(pw) for v in pair)
    return torch.nn.functional.pad(x, flat)

kernel_name = 'sequential_preLN__gqa_block_cached__glu_gated_reglu__decode'

def setup_inputs():

    _w = (lambda a: (lambda t: t.to(torch.bfloat16) if t.is_floating_point() else t)(torch.as_tensor(a)))
    def _A_setup():
        B, Sq, D = 2, 1, 512
        Hq, Hkv, Sk, Dh = 32, 32, 8192, 128
        assert Hq % Hkv == 0, (Hq, Hkv)
        return {
            "x": _w((lambda *s: torch.randn(*s, dtype=torch.bfloat16) * 0.05)(B, Sq, D)),
            "k_cache": _w((lambda *s: torch.randn(*s, dtype=torch.bfloat16) * 1.6)(B, Hkv, Sk, Dh)),
            "v_cache": _w((lambda *s: torch.randn(*s, dtype=torch.bfloat16) * 0.8)(B, Hkv, Sk, Dh)),
            "wq": _w((lambda *s: torch.randn(*s, dtype=torch.bfloat16) * 1.6)(D, Hq * Dh) * (D ** -0.5)),
            "wo": _w((lambda *s: torch.randn(*s, dtype=torch.bfloat16) * 0.8)(Hq * Dh, D) * ((Hq * Dh) ** -0.5)),
        }
    _A_in = _A_setup()

    def _B_setup():
        B, S, D, F = 2, 1, 512, 1376
        return {
            "x": _w((lambda *s: torch.randn(*s, dtype=torch.bfloat16) * 0.05)(B, S, D)),
            "W_gate": _w((lambda *s: torch.randn(*s, dtype=torch.bfloat16) * 0.4)(D, F) * (2.0 / D) ** 0.5),
            "W_up": _w((lambda *s: torch.randn(*s, dtype=torch.bfloat16) * 0.4)(D, F) * (2.0 / D) ** 0.5),
            "W_down": _w((lambda *s: torch.randn(*s, dtype=torch.bfloat16) * 0.4)(F, D) * (1.0 / F) ** 0.5),
        }
    _B_in = _B_setup()

    return {
        "A_x": _A_in["x"],
        "A_k_cache": _A_in["k_cache"],
        "A_v_cache": _A_in["v_cache"],
        "A_wq": _A_in["wq"],
        "A_wo": _A_in["wo"],
        "B_x": _B_in["x"],
        "B_W_gate": _B_in["W_gate"],
        "B_W_up": _B_in["W_up"],
        "B_W_down": _B_in["W_down"],
    }

def reference(A_x, A_k_cache, A_v_cache, A_wq, A_wo, B_x, B_W_gate, B_W_up, B_W_down):
    def _A_ref(x, k_cache, v_cache, wq, wo):
        B, Sq, D = x.shape
        Hq, Dh = 32, 128
        Hkv = k_cache.shape[1]
        rep = Hq // Hkv
        q = (lambda x, *d: x.permute(*d))((x @ wq).reshape(B, Sq, Hq, Dh), 0, 2, 1, 3)
        k = (lambda x, n, axis: torch.repeat_interleave(x, n, dim=axis))(k_cache, rep, axis=1)
        v = (lambda x, n, axis: torch.repeat_interleave(x, n, dim=axis))(v_cache, rep, axis=1)
        scores = torch.einsum("bhqd,bhkd->bhqk", q, k) * (Dh ** -0.5)
        p = _softmax(scores, axis=-1)
        o = torch.einsum("bhqk,bhkd->bhqd", p, v)
        return (lambda x, *d: x.permute(*d))(o, 0, 2, 1, 3).reshape(B, Sq, Hq * Dh) @ wo

    def _B_ref(x, W_gate, W_up, W_down):
        gate = torch.einsum("bsd,df->bsf", x, W_gate)
        up = torch.einsum("bsd,df->bsf", x, W_up)
        gate = gate * (lambda x, dt: x.to(dt))(gate > 0, gate.dtype)
        h = gate * up
        return torch.einsum("bsf,fd->bsd", h, W_down)

    x = A_x
    h = x + _A_ref(_layernorm(x, axis=-1), A_k_cache, A_v_cache, A_wq, A_wo)
    h2 = h + _B_ref(_layernorm(h, axis=-1), B_W_gate, B_W_up, B_W_down)
    return h2
```

```python
import re

TRANS = ("v_exp_f32", "v_log_f32", "v_rcp_f32", "v_rsq_f32", "v_sqrt_f32", "v_sin_f32", "v_cos_f32")

def _expand(op):
    op = op.strip()
    neg = op.startswith("-")
    if neg: op = op[1:]
    if op.startswith("abs(") and op.endswith(")"): op = op[4:-1]
    if op.startswith("|") and op.endswith("|"): op = op[1:-1]
    m = re.fullmatch(r"([vsa])(\d+)", op)
    if m: return [(m.group(1), int(m.group(2)))]
    m = re.fullmatch(r"([vsa])\[(\d+):(\d+)\]", op)
    if m: return [(m.group(1), i) for i in range(int(m.group(2)), int(m.group(3)) + 1)]
    if op in ("vcc", "vcc_lo", "vcc_hi"): return [("vcc", 0)]
    if op in ("exec", "exec_lo", "exec_hi"): return [("exec", 0)]
    if op == "m0": return [("m0", 0)]
    return []

class Ins:
    __slots__ = ("text", "op", "ops", "kind", "wr", "rd", "dpp", "mods")
    def __init__(self, text):
        self.text = text
        t = text.split(";")[0].strip()
        parts = t.split(None, 1)
        self.op = parts[0]
        rest = parts[1] if len(parts) > 1 else ""
        qp = re.search(r"quad_perm:\[[^\]]*\]", rest)
        if qp: rest = rest.replace(qp.group(0), "quad_perm:X")
        ops = [x.strip() for x in rest.split(",")] if rest else []
        mods = ""
        if ops:
            last = ops[-1].split(None, 1)
            ops[-1] = last[0]
            if len(last) > 1: mods = last[1]
        self.ops = ops
        self.mods = mods
        op = self.op
        self.dpp = ("_dpp" in op) or any(k in mods for k in ("row_", "quad_perm", "row_newbcast", "wave_"))
        base = op.replace("_dpp", "").replace("_e32", "").replace("_e64", "")
        self.op = base
        wr, rd = [], []
        if base.startswith("v_mfma"):
            self.kind = "mfma"
            wr = _expand(ops[0]); rd = _expand(ops[1]) + _expand(ops[2]) + _expand(ops[3])
        elif base.startswith("v_"):
            self.kind = "valu"
            if base.startswith("v_cmp"):
                wr = _expand(ops[0]); rd = sum((_expand(o) for o in ops[1:]), [])
            elif base.startswith("v_permlane") and "swap" in base:
                wr = _expand(ops[0]) + _expand(ops[1]); rd = list(wr)
            elif base in ("v_readfirstlane_b32", "v_readlane_b32"):
                wr = _expand(ops[0]); rd = sum((_expand(o) for o in ops[1:]), [])
            elif base == "v_writelane_b32":
                wr = _expand(ops[0]); rd = sum((_expand(o) for o in ops), [])
            elif base in ("v_add_co_u32", "v_sub_co_u32", "v_addc_co_u32"):
                wr = _expand(ops[0]) + _expand(ops[1]); rd = sum((_expand(o) for o in ops[2:]), [])
            else:
                wr = _expand(ops[0]); rd = sum((_expand(o) for o in ops[1:]), [])
                if base.startswith(("v_fmac", "v_dot2c", "v_pk_fmac")) or self.dpp:
                    rd += _expand(ops[0])
                if base == "v_cndmask_b32" and len(ops) == 3:
                    rd += [("vcc", 0)]
        elif base.startswith("buffer_") or base.startswith("global_"):
            self.kind = "vmem"
            if base.startswith("buffer_load"):
                wr = _expand(ops[0]); rd = sum((_expand(o) for o in ops[1:]), [])
            elif base.startswith("buffer_store"):
                rd = sum((_expand(o) for o in ops), [])
            elif base.startswith("buffer_atomic"):
                rd = sum((_expand(o) for o in ops), [])
                if "sc0" in mods: wr = _expand(ops[0])
            elif base.startswith("global_load"):
                wr = _expand(ops[0]); rd = sum((_expand(o) for o in ops[1:]), [])
            else:
                rd = sum((_expand(o) for o in ops), [])
        elif base.startswith("ds_"):
            self.kind = "ds"
            if base.startswith(("ds_read", "ds_bpermute", "ds_permute", "ds_swizzle")) or "_rtn" in base:
                wr = _expand(ops[0]); rd = sum((_expand(o) for o in ops[1:]), [])
            else:
                rd = sum((_expand(o) for o in ops), [])
        elif base.startswith("s_"):
            self.kind = "salu"
            if base in ("s_nop", "s_waitcnt", "s_barrier", "s_endpgm", "s_sleep", "s_branch", "s_setprio") or base.startswith("s_cbranch"):
                pass
            elif base.startswith("s_cmp") or base.startswith("s_bitcmp"):
                rd = sum((_expand(o) for o in ops), [])
            else:
                wr = _expand(ops[0]) if ops else []
                rd = sum((_expand(o) for o in ops[1:]), [])
        else:
            raise ValueError("unknown instruction: " + text)
        self.wr, self.rd = wr, rd

    def states(self):
        if self.op == "s_nop":
            return int(self.ops[0], 0) + 1
        return 1

def need(p, c):
    n = 0
    pw = set(p.wr)
    crd = set(c.rd); cwr = set(c.wr)
    pv = {r for r in pw if r[0] in ("v", "a")}
    ps = {r for r in pw if r[0] in ("s", "vcc")}
    if p.kind == "valu":
        isdot = p.op.startswith("v_dot")
        if pv & crd:
            if c.kind == "valu" and c.dpp and (pv & set(_expand(c.ops[1]))): n = max(n, 2)
            if c.op.startswith("v_permlane"): n = max(n, 2)
            if c.op in ("v_readfirstlane_b32", "v_readlane_b32"): n = max(n, 1)
            if p.op in TRANS and c.kind == "valu" and c.op not in TRANS: n = max(n, 1)
            if p.op in TRANS and c.kind != "valu": n = max(n, 1)
            if c.kind == "mfma": n = max(n, 2)
        if isdot and (pv & (crd | cwr)):
            if c.op == p.op:
                srcab = set(sum((_expand(o) for o in c.ops[1:3]), []))
                if pv & srcab: n = max(n, 3)
            else:
                n = max(n, 3)
        if ps & crd:
            if c.kind == "valu":
                n = max(n, 2)
                if c.op in ("v_readlane_b32", "v_writelane_b32"): n = max(n, 4)
            if c.kind == "vmem": n = max(n, 5)
        if ("exec", 0) in pw:
            n = max(n, 5) if c.kind in ("valu", "mfma") else n
    if p.kind == "mfma":
        if pv & (crd | cwr):
            if c.kind == "mfma":
                srcc = set(_expand(c.ops[3])); srcab = set(_expand(c.ops[1]) + _expand(c.ops[2]))
                if pv & srcab: n = max(n, 8)
                if pv & srcc:
                    if set(_expand(c.ops[3])) == pv and c.ops[3] == p.ops[0]: pass
                    else: n = max(n, 6)
                elif pv & cwr and not (pv & srcab):
                    n = max(n, 6)
            else:
                n = max(n, 8)
        srcc = set(_expand(p.ops[3]))
        if c.kind == "valu" and (srcc & cwr): n = max(n, 3)
    if p.kind == "vmem" and p.op.startswith(("buffer_store", "global_store", "buffer_atomic")) and ("x4" in p.op or "x3" in p.op):
        data = set(_expand(p.ops[0] if p.op.startswith("buffer") else p.ops[1]))
        if data & cwr:
            n = max(n, 2 if c.kind == "valu" else 1)
    if p.kind == "salu" and ("m0", 0) in pw and ("m0", 0) in crd and c.kind != "salu":
        n = max(n, 1)
    return n

class K:
    def __init__(self):
        self.lines = []
        self._lab = 0
    def I(self, s, *a):
        if a: s = s % a
        for x in s.split("\n"):
            x = x.strip()
            if x: self.lines.append(x)
    __call__ = I
    def label(self, name): self.lines.append(name + ":")
    def newlabel(self, p="L"):
        self._lab += 1
        return "%s_%d" % (p, self._lab)
    def c(self, s): self.lines.append("; " + s)
    def finish(self, maxlook=12):
        out = []
        hist = []
        labels = {}
        insl = []
        for ln in self.lines:
            if ln.endswith(":") or ln.startswith((";", ".")):
                out.append(ln)
                continue
            ins = Ins(ln)
            dist = 0; pad = 0
            for p in reversed(hist[-maxlook:]):
                nd = need(p, ins)
                if nd > dist: pad = max(pad, nd - dist)
                dist += p.states()
                if dist >= maxlook: break
            if pad > 0:
                nop = Ins("s_nop %d" % (pad - 1))
                out.append(nop.text + "  ; auto")
                hist.append(nop)
            out.append(ln)
            hist.append(ins)
        idx = {}
        seq = []
        for ln in out:
            if ln.endswith(":"):
                idx[ln[:-1]] = len(seq)
            elif ln.startswith((";", ".")):
                continue
            else:
                seq.append(Ins(ln))
        problems = []
        for i, ins in enumerate(seq):
            if ins.op == "s_branch" or ins.op.startswith("s_cbranch"):
                tgt = ins.ops[0]
                if tgt not in idx: continue
                t = idx[tgt]
                pre = seq[max(0, i - maxlook):i + 1]
                for j in range(t, min(len(seq), t + maxlook)):
                    c = seq[j]
                    base = sum(x.states() for x in seq[t:j])
                    dist = base
                    for p in reversed(pre):
                        nd = need(p, c)
                        if nd > dist:
                            problems.append("edge %s -> %s: '%s' then '%s' needs %d has %d" % (ins.text, tgt, p.text, c.text, nd, dist))
                        dist += p.states()
                        if dist >= maxlook: break
                    if c.op == "s_branch" or c.op == "s_endpgm": break
        self.problems = problems
        return out
```

```python
import sys
from asmlib import K

KNAME = "sequential_preLN__gqa_block_cached__glu_gated_reglu__decode_kernel"
REF = "sequential_preLN__gqa_block_cached__glu_gated_reglu__decode.s.ref"
HEADER = open(REF).read().split("; Override")[0]

EPOCH = 0
CNT = 0x1000
QG = 0x10000
OREC = 0x100000
YREC = 0x140000
HBUF = 0x160000
HHBUF = 0x161000
DBG = 0x200000
WSREC = 0x300000
L_Q = 0x000
L_FLAG = 0x100
L_MLP = 0x120
L_PART = 0x200
L_YP = 0xA00
L_GUD = 0x1200
L_STAT = 0x1600
L_CS = 0x1700
L_DP = 0x1900
L_HB = 0x1B00
LDS_BYTES = 0x2000

SENT_CLAMP = 0xFFFFFFFE
SPIN = 1 << 14

def gen(path, NS=28, CAP=8, stamps=False, XP0=2, XP1=8, b0=False, dbgdump=False):
    k = K()
    I = k.I
    vST = 200
    nst = [0]
    def stamp(idx):
        if not stamps: return
        I("s_memrealtime s[98:99]")
        I("s_waitcnt lgkmcnt(0)")
        I("v_writelane_b32 v%d, s98, %d" % (vST, idx))
    def stamp_flush():
        if not stamps: return
        I("s_mov_b64 exec, -1")
        I("s_getreg_b32 s98, hwreg(HW_REG_XCC_ID)")
        I("v_writelane_b32 v%d, s98, 63" % vST)
        I("s_lshl_b32 s98, s2, 3")
        I("s_add_u32 s98, s98, s28")
        I("s_lshl_b32 s98, s98, 8")
        I("s_add_u32 s98, s98, %d" % DBG)
        I("v_lshlrev_b32 v%d, 2, v0" % (vST + 1))
        I("buffer_store_dword v%d, v%d, s[36:39], s98 offen" % (vST, vST + 1))

    def rnd(dst, src):
        I("v_cvt_pk_bf16_f32 v%d, v%d, v%d" % (dst, src, src))
        I("v_and_b32 v%d, 0xffff0000, v%d" % (dst, dst))

    def swap_reduce(op, v, t):
        I("v_mov_b32 v%d, v%d" % (t, v))
        I("v_permlane16_swap_b32 v%d, v%d" % (t, v))
        I("%s v%d, v%d, v%d" % (op, v, v, t))
        I("v_mov_b32 v%d, v%d" % (t, v))
        I("v_permlane32_swap_b32 v%d, v%d" % (t, v))
        I("%s v%d, v%d, v%d" % (op, v, v, t))

    I("s_cmp_ge_u32 s2, 256")
    I("s_cbranch_scc1 L_end")
    I("s_load_dwordx16 s[4:19], s[0:1], 0")
    I("s_load_dwordx8 s[20:27], s[0:1], 64")
    I("v_lshrrev_b32 v1, 6, v0")
    I("v_and_b32 v0, 63, v0")
    I("v_readfirstlane_b32 s28, v1")
    I("s_lshr_b32 s29, s2, 3")
    I("s_and_b32 s30, s2, 7")
    I("s_bfe_u32 s31, s2, 0x10001")
    I("s_bfe_u32 s32, s2, 0x10002")
    I("s_lshl_b32 s32, s32, 1")
    I("s_and_b32 s33, s2, 1")
    I("s_or_b32 s32, s32, s33")
    I("s_lshl_b32 s33, s31, 5")
    I("s_add_u32 s33, s33, s29")
    if stamps:
        I("v_mov_b32 v%d, 0" % vST)
        stamp(0)
    I("s_waitcnt lgkmcnt(0)")
    I("s_mov_b32 s36, s26")
    I("s_mov_b32 s37, s27")
    I("s_mov_b32 s38, %d" % WSREC)
    I("s_mov_b32 s39, 0x20000")
    I("s_cmp_ge_u32 s28, 4")
    I("s_cbranch_scc1 L_helper")

    vOff = 1; vQ = 2; vAcc = 6; vM = 14; vL = 15
    a = [16, 17, 18, 19]; u0 = 20; u1 = 21; vw = 22; vt = 23; vsc = 24; vmx = 25; vmn = 26; vp = 27; val = 28
    vplo = 29; vphi = 30; vT = [31, 32]; vCA = 33
    SA, SB, P0, P1 = 36, 68, 100, 132
    RD = 2
    I("v_lshlrev_b32 v%d, 4, v0" % vOff)
    I("s_lshl_b32 s52, s33, 21")
    I("s_add_u32 s40, s6, s52")
    I("s_addc_u32 s41, s7, 0")
    I("s_mov_b32 s42, 0x200000")
    I("s_mov_b32 s43, 0x20000")
    I("s_add_u32 s44, s8, s52")
    I("s_addc_u32 s45, s9, 0")
    I("s_mov_b32 s46, 0x200000")
    I("s_mov_b32 s47, 0x20000")
    I("s_mov_b32 s48, s26")
    I("s_mov_b32 s49, s27")
    I("s_mov_b32 s50, 0")
    I("s_mov_b32 s51, 0x20000")
    I("s_lshl_b32 s60, s32, 2")
    I("s_add_u32 s60, s60, s28")
    I("s_lshl_b32 s61, s33, 8")
    I("s_add_u32 s61, s61, %d" % CNT)
    I("v_mov_b32 v%d, s61" % vCA)
    if b0: I("s_barrier")
    outstanding = [0]
    def paced():
        if outstanding[0] >= CAP:
            I("s_waitcnt vmcnt(%d)" % (CAP - 1))
            outstanding[0] = CAP - 1
        outstanding[0] += 1
    def ld(base, kv, j, soff="s52"):
        r = base + 16 * kv + 4 * j
        I("buffer_load_dwordx4 v[%d:%d], v%d, %s, %s offen offset:%d nt" % (r, r + 3, vOff, "s[40:43]" if kv == 0 else "s[44:47]", soff, 1024 * j))
    def issue_atomic(slot):
        I("s_cmp_lt_u32 s54, %d" % NS)
        I("s_cselect_b32 s50, 0, %d" % WSREC)
        I("v_mov_b32 v%d, 1" % vT[slot])
        I("s_mov_b64 exec, 1")
        I("buffer_atomic_add v%d, v%d, s[48:51], 0 offen sc0 sc1" % (vT[slot], vCA))
        I("s_mov_b64 exec, -1")
        I("s_add_u32 s54, s54, 1")
    for ci, base in enumerate((P0, P1, SA, SB)):
        I("s_add_u32 s52, s60, %d" % (16 * ci))
        I("s_lshl_b32 s52, s52, 12")
        if ci == 2: I("s_mov_b32 s54, 4")
        if ci >= 2:
            paced(); issue_atomic(ci - 2)
        for kv in range(2):
            for j in range(4):
                paced(); ld(base, kv, j)
    I("s_mov_b32 s53, 4")
    I("s_mov_b32 s55, 1")
    I("s_mov_b32 s56, 1")
    I("s_mov_b32 s57, 0")
    for i in range(8): I("v_mov_b32 v%d, 0" % (vAcc + i))
    I("v_mov_b32 v%d, 0xf149f2ca" % vM)
    I("v_mov_b32 v%d, 0" % vL)
    stamp(1)
    I("s_barrier")
    I("v_and_b32 v%d, 15, v0" % vt)
    I("v_lshlrev_b32 v%d, 4, v%d" % (vt, vt))
    I("ds_read_b128 v[%d:%d], v%d offset:%d" % (vQ, vQ + 3, vt, L_Q))
    I("s_waitcnt lgkmcnt(0)")
    stamp(2)

    def consume(base, wait=None, reload=None):
        for j in range(4):
            if wait: wait(0, j)
            r = base + 4 * j
            I("v_dot2_f32_bf16 v%d, v%d, v%d, 0" % (a[j], r, vQ))
            for t in range(1, 4):
                I("v_dot2_f32_bf16 v%d, v%d, v%d, v%d" % (a[j], r + t, vQ + t, a[j]))
            if reload: reload(0, j)
        I("v_add_f32_dpp v%d, v%d, v%d row_ror:8 row_mask:0xf bank_mask:0x3" % (u0, a[0], a[0]))
        I("v_add_f32_dpp v%d, v%d, v%d row_ror:8 row_mask:0xf bank_mask:0xc" % (u0, a[2], a[2]))
        I("v_add_f32_dpp v%d, v%d, v%d row_ror:8 row_mask:0xf bank_mask:0x3" % (u1, a[1], a[1]))
        I("v_add_f32_dpp v%d, v%d, v%d row_ror:8 row_mask:0xf bank_mask:0xc" % (u1, a[3], a[3]))
        I("v_add_f32_dpp v%d, v%d, v%d row_half_mirror row_mask:0xf bank_mask:0x5" % (vw, u0, u0))
        I("v_add_f32_dpp v%d, v%d, v%d row_half_mirror row_mask:0xf bank_mask:0xa" % (vw, u1, u1))
        I("v_add_f32_dpp v%d, v%d, v%d quad_perm:[1,0,3,2] row_mask:0xf bank_mask:0xf" % (vt, vw, vw))
        I("v_add_f32_dpp v%d, v%d, v%d quad_perm:[2,3,0,1] row_mask:0xf bank_mask:0xf" % (vw, vt, vt))
        rnd(vw, vw)
        I("v_mul_f32 v%d, 0x3db504f3, v%d" % (vw, vw))
        rnd(vw, vw)
        I("v_mul_f32 v%d, 0x3fb8aa3b, v%d" % (vsc, vw))
        I("v_max_f32_dpp v%d, v%d, v%d row_ror:4 row_mask:0xf bank_mask:0xf" % (vmx, vsc, vsc))
        I("v_max_f32_dpp v%d, v%d, v%d row_ror:8 row_mask:0xf bank_mask:0xf" % (vmn, vmx, vmx))
        I("v_max_f32 v%d, v%d, v%d" % (vmn, vmn, vM))
        I("v_sub_f32 v%d, v%d, v%d" % (vp, vsc, vmn))
        I("v_sub_f32 v%d, v%d, v%d" % (val, vM, vmn))
        I("v_exp_f32 v%d, v%d" % (vp, vp))
        I("v_exp_f32 v%d, v%d" % (val, val))
        I("v_mov_b32 v%d, v%d" % (vM, vmn))
        I("v_cvt_pk_bf16_f32 v%d, v%d, 0" % (vplo, vp))
        I("v_lshlrev_b32 v%d, 16, v%d" % (vphi, vplo))
        I("v_fma_f32 v%d, v%d, v%d, v%d" % (vL, vL, val, vphi))
        for i in range(8):
            I("v_mul_f32 v%d, v%d, v%d" % (vAcc + i, vAcc + i, val))
        for j in range(4):
            if wait: wait(1, j)
            r = base + 16 + 4 * j
            for t in range(4):
                I("v_dot2c_f32_bf16_dpp v%d, v%d, v%d row_newbcast:%d row_mask:0xf bank_mask:0xf" % (vAcc + 2 * t, vplo, r + t, 4 * j))
                I("v_dot2c_f32_bf16_dpp v%d, v%d, v%d row_newbcast:%d row_mask:0xf bank_mask:0xf" % (vAcc + 2 * t + 1, vphi, r + t, 4 * j))
            if reload: reload(1, j)

    k.label("L_loop")
    for slot, base in enumerate((SA, SB)):
        if slot == 0:
            I("s_cmp_eq_u32 s57, %d" % XP0)
            I("s_cbranch_scc1 L_park0")
            k.label("L_park0_ret")
            I("s_cmp_eq_u32 s57, %d" % XP1)
            I("s_cbranch_scc1 L_park1")
            k.label("L_park1_ret")
        I("s_cmp_eq_u32 s%d, 0" % (55 + slot))
        I("s_cbranch_scc1 L_fin")
        I("s_waitcnt vmcnt(%d)" % (9 * RD - 2))
        I("v_readfirstlane_b32 s52, v%d" % vT[slot])
        I("s_lshl_b32 s62, s53, 4")
        I("s_add_u32 s62, s62, s60")
        I("s_add_u32 s52, s52, %d" % (NS * 16))
        I("s_cmp_lt_u32 s53, %d" % NS)
        I("s_cselect_b32 s52, s62, s52")
        I("s_add_u32 s53, s53, 1")
        I("s_cmp_lt_u32 s52, 512")
        I("s_cselect_b32 s42, 0x200000, 0")
        I("s_cselect_b32 s46, 0x200000, 0")
        I("s_cselect_b32 s%d, 1, 0" % (55 + slot))
        I("s_lshl_b32 s52, s52, 12")
        issue_atomic(slot)
        def wait(kv, j):
            if not (kv == 0 and j == 0):
                I("s_waitcnt vmcnt(%d)" % (9 * RD - 1))
        consume(base, wait, lambda kv, j, base=base: ld(base, kv, j))
        I("s_add_u32 s57, s57, 1")
    I("s_branch L_loop")
    k.label("L_park0")
    consume(P0)
    I("s_branch L_park0_ret")
    k.label("L_park1")
    consume(P1)
    I("s_mov_b32 s62, %d" % SPIN)
    I("v_mov_b32 v%d, %d" % (vt, L_FLAG))
    k.label("L_flagspin")
    I("ds_read_b32 v%d, v%d" % (vw, vt))
    I("s_waitcnt lgkmcnt(0)")
    I("v_readfirstlane_b32 s63, v%d" % vw)
    I("s_cmp_eq_u32 s63, 1")
    I("s_cbranch_scc1 L_park1_ret")
    I("s_sleep 8")
    I("s_sub_u32 s62, s62, 1")
    I("s_cbranch_scc0 L_flagspin")
    I("s_branch L_park1_ret")

    k.label("L_fin")
    stamp(3)
    I("v_add_f32_dpp v%d, v%d, v%d row_ror:4 row_mask:0xf bank_mask:0xf" % (vt, vL, vL))
    I("v_mov_b32 v%d, v%d" % (vmn, vM))
    I("v_add_f32_dpp v%d, v%d, v%d row_ror:8 row_mask:0xf bank_mask:0xf" % (vL, vt, vt))
    swap_reduce("v_max_f32", vmn, vt)
    I("v_sub_f32 v%d, v%d, v%d" % (val, vM, vmn))
    I("v_exp_f32 v%d, v%d" % (val, val))
    I("v_mul_f32 v%d, v%d, v%d" % (vL, vL, val))
    for i in range(8):
        I("v_mul_f32 v%d, v%d, v%d" % (vAcc + i, vAcc + i, val))
    swap_reduce("v_add_f32", vL, vt)
    for i in range(4):
        I("v_permlane32_swap_b32 v%d, v%d" % (vAcc + i, vAcc + i + 4))
    for i in range(4):
        I("v_add_f32 v%d, v%d, v%d" % (vAcc + i, vAcc + i, vAcc + i + 4))
    I("v_permlane16_swap_b32 v%d, v%d" % (vAcc + 0, vAcc + 2))
    I("v_permlane16_swap_b32 v%d, v%d" % (vAcc + 1, vAcc + 3))
    I("v_add_f32 v%d, v%d, v%d" % (vAcc + 0, vAcc + 0, vAcc + 2))
    I("v_add_f32 v%d, v%d, v%d" % (vAcc + 1, vAcc + 1, vAcc + 3))
    I("v_and_b32 v%d, 15, v0" % vt)
    I("v_lshrrev_b32 v%d, 4, v0" % vw)
    I("v_lshlrev_b32 v%d, 5, v%d" % (vt, vt))
    I("v_lshl_add_u32 v%d, v%d, 3, v%d" % (vt, vw, vt))
    I("s_lshl_b32 s62, s28, 9")
    I("v_add_u32 v%d, s62, v%d" % (vt, vt))
    I("ds_write_b64 v%d, v[%d:%d] offset:%d" % (vt, vAcc, vAcc + 1, L_PART))
    I("v_mov_b32 v%d, v%d" % (vM, vmn))
    I("s_lshl_b32 s62, s28, 3")
    I("v_mov_b32 v%d, s62" % vt)
    I("s_mov_b64 exec, 1")
    I("ds_write_b64 v%d, v[%d:%d] offset:%d" % (vt, vM, vL, L_MLP))
    I("s_mov_b64 exec, -1")
    I("s_waitcnt lgkmcnt(0)")
    I("s_barrier")
    I("s_cmp_lg_u32 s28, 0")
    I("s_cbranch_scc1 L_sdone")
    Z = P0
    I("v_mov_b32 v20, 0")
    I("v_lshlrev_b32 v21, 3, v0")
    I("ds_read_b128 v[%d:%d], v20 offset:%d" % (Z, Z + 3, L_MLP))
    I("ds_read_b128 v[%d:%d], v20 offset:%d" % (Z + 4, Z + 7, L_MLP + 16))
    for w in range(4):
        I("ds_read_b64 v[%d:%d], v21 offset:%d" % (Z + 8 + 2 * w, Z + 9 + 2 * w, L_PART + 512 * w))
    I("s_lshl_b32 s62, s2, 10")
    I("s_add_u32 s62, s62, %d" % OREC)
    I("s_waitcnt lgkmcnt(4)")
    MM = Z + 16; LL = Z + 17; O0 = Z + 18; O1 = Z + 19
    I("v_max_f32 v%d, v%d, v%d" % (MM, Z, Z + 2))
    I("v_max3_f32 v%d, v%d, v%d, v%d" % (MM, MM, Z + 4, Z + 6))
    for w in range(4):
        I("v_sub_f32 v%d, v%d, v%d" % (Z + 2 * w, Z + 2 * w, MM))
    for w in range(4):
        I("v_exp_f32 v%d, v%d" % (Z + 2 * w, Z + 2 * w))
    I("v_mul_f32 v%d, v%d, v%d" % (LL, Z, Z + 1))
    for w in range(1, 4):
        I("v_fmac_f32 v%d, v%d, v%d" % (LL, Z + 2 * w, Z + 2 * w + 1))
    I("s_waitcnt lgkmcnt(0)")
    I("v_mul_f32 v%d, v%d, v%d" % (O0, Z, Z + 8))
    I("v_mul_f32 v%d, v%d, v%d" % (O1, Z, Z + 9))
    for w in range(1, 4):
        I("v_fmac_f32 v%d, v%d, v%d" % (O0, Z + 2 * w, Z + 8 + 2 * w))
        I("v_fmac_f32 v%d, v%d, v%d" % (O1, Z + 2 * w, Z + 9 + 2 * w))
    I("s_mov_b32 s63, 0x%x" % SENT_CLAMP)
    for r in (MM, LL, O0, O1):
        I("v_min_u32 v%d, s63, v%d" % (r, r))
    I("buffer_store_dwordx2 v[%d:%d], v21, s[36:39], s62 offen sc1" % (O0, O1))
    I("s_mov_b64 exec, 1")
    I("buffer_store_dwordx2 v[%d:%d], v20, s[36:39], s62 offen offset:512 sc1" % (MM, LL))
    I("s_mov_b64 exec, -1")
    stamp(4)
    k.label("L_sdone")
    stamp_flush()
    I("s_endpgm")

    k.label("L_helper")
    I("s_sub_u32 s34, s28, 4")
    g = 1; n = 2
    I("v_lshrrev_b32 v%d, 4, v0" % g)
    I("v_and_b32 v%d, 15, v0" % n)
    I("s_mov_b32 s44, s10"); I("s_mov_b32 s45, s11"); I("s_mov_b32 s46, 0x400000"); I("s_mov_b32 s47, 0x20000")
    I("s_mov_b32 s40, s4"); I("s_mov_b32 s41, s5"); I("s_mov_b32 s42, 2048"); I("s_mov_b32 s43, 0x20000")
    I("v_lshrrev_b32 v3, 3, v%d" % n)
    I("v_lshlrev_b32 v4, 2, v3")
    I("v_add_u32 v4, v4, v%d" % g)
    I("v_lshlrev_b32 v5, 16, v4")
    I("v_and_b32 v6, 7, v%d" % n)
    I("v_lshl_add_u32 v5, v6, 3, v5")
    I("s_lshl_b32 s52, s30, 19")
    I("s_lshl_b32 s53, s29, 8")
    I("s_add_u32 s52, s52, s53")
    I("s_lshl_b32 s53, s34, 6")
    I("s_add_u32 s52, s52, s53")
    R = 16
    for j in range(8):
        I("buffer_load_dwordx2 v[%d:%d], v5, s[44:47], s52 offen" % (R + 2 * j, R + 2 * j + 1))
        if j < 7: I("s_add_u32 s52, s52, 8192")
    XF = 48
    I("v_and_b32 v7, 1, v0")
    I("v_lshlrev_b32 v7, 10, v7")
    I("v_lshrrev_b32 v8, 1, v0")
    I("v_lshl_add_u32 v8, v8, 5, v7")
    I("buffer_load_dwordx4 v[%d:%d], v8, s[40:43], 0 offen" % (XF, XF + 3))
    I("buffer_load_dwordx4 v[%d:%d], v8, s[40:43], 0 offen offset:16" % (XF + 4, XF + 7))
    XA = 56
    I("v_bfe_u32 v9, v%d, 1, 1" % n)
    I("v_lshlrev_b32 v9, 2, v9")
    I("v_add_u32 v9, v9, v%d" % g)
    I("v_lshl_add_u32 v9, v9, 4, v7")
    I("s_lshl_b32 s53, s30, 7")
    I("buffer_load_dwordx4 v[%d:%d], v9, s[40:43], s53 offen" % (XA, XA + 3))
    I("buffer_load_dword v10, off, s[36:39], 0 offset:%d sc1" % EPOCH)
    if b0: I("s_barrier")
    I("v_mov_b32 v11, 0")
    I("v_mov_b32 v12, %d" % L_FLAG)
    I("ds_write_b32 v12, v11")
    I("s_mov_b32 s64, 0x05040100")
    I("s_mov_b32 s65, 0x07060302")
    stamp(1)
    F = 64
    I("s_waitcnt vmcnt(2)")
    for t in range(8):
        I("v_lshlrev_b32 v%d, 16, v%d" % (F + 2 * t, XF + t))
        I("v_and_b32 v%d, 0xffff0000, v%d" % (F + 2 * t + 1, XF + t))
    def lane_par_reduce(v, t):
        I("v_add_f32_dpp v%d, v%d, v%d row_ror:2 row_mask:0xf bank_mask:0xf" % (t, v, v))
        I("v_add_f32_dpp v%d, v%d, v%d row_ror:4 row_mask:0xf bank_mask:0xf" % (v, t, t))
        I("v_add_f32_dpp v%d, v%d, v%d row_ror:8 row_mask:0xf bank_mask:0xf" % (t, v, v))
        I("v_mov_b32 v%d, v%d" % (v, t))
        swap_reduce("v_add_f32", v, t)
    I("v_add_f32 v12, v%d, v%d" % (F, F + 1))
    I("v_add_f32 v13, v%d, v%d" % (F + 2, F + 3))
    for t in range(4, 16, 2):
        I("v_add_f32 v12, v12, v%d" % (F + t))
        I("v_add_f32 v13, v13, v%d" % (F + t + 1))
    I("v_add_f32 v12, v12, v13")
    lane_par_reduce(12, 13)
    I("v_mul_f32 v12, 0x3b000000, v12")
    I("v_mov_b32 v14, 0")
    I("v_mov_b32 v15, 0")
    for t in range(16):
        I("v_sub_f32 v%d, v%d, v12" % (F + t, F + t))
    for t in range(0, 16, 2):
        I("v_fmac_f32 v14, v%d, v%d" % (F + t, F + t))
        I("v_fmac_f32 v15, v%d, v%d" % (F + t + 1, F + t + 1))
    I("v_add_f32 v14, v14, v15")
    lane_par_reduce(14, 13)
    I("v_mul_f32 v14, 0x3b000000, v14")
    rnd(14, 14)
    I("v_add_f32 v14, 0x3727c5ac, v14")
    rnd(14, 14)
    I("v_sqrt_f32 v14, v14")
    rnd(14, 14)
    I("v_rcp_f32 v14, v14")
    rnd(12, 12)
    A = 60
    I("s_waitcnt vmcnt(1)")
    for t in range(4):
        I("v_lshlrev_b32 v%d, 16, v%d" % (F + 0, XA + t))
        I("v_and_b32 v%d, 0xffff0000, v%d" % (F + 1, XA + t))
        I("v_sub_f32 v%d, v%d, v12" % (F + 0, F + 0))
        I("v_sub_f32 v%d, v%d, v12" % (F + 1, F + 1))
        I("v_cvt_pk_bf16_f32 v%d, v%d, v%d" % (F + 2, F + 0, F + 1))
        I("v_lshlrev_b32 v%d, 16, v%d" % (F + 0, F + 2))
        I("v_and_b32 v%d, 0xffff0000, v%d" % (F + 1, F + 2))
        I("v_mul_f32 v%d, v%d, v14" % (F + 0, F + 0))
        I("v_mul_f32 v%d, v%d, v14" % (F + 1, F + 1))
        I("v_cvt_pk_bf16_f32 v%d, v%d, v%d" % (A + t, F + 0, F + 1))
    Bc = 32
    def perm4(src, dst):
        for c in range(4):
            for jj in range(4):
                I("v_perm_b32 v%d, v%d, v%d, s%d" % (dst + 4 * c + jj, src + 2 * (2 * jj + 1) + (c >> 1), src + 2 * (2 * jj) + (c >> 1), 64 + (c & 1)))
    perm4(R, Bc)
    D = 80
    for c in range(4):
        I("v_mfma_f32_16x16x32_bf16 v[%d:%d], v[%d:%d], v[%d:%d], 0" % (D + 4 * c, D + 4 * c + 3, A, A + 3, Bc + 4 * c, Bc + 4 * c + 3))
    I("s_waitcnt vmcnt(0)")
    I("v_readfirstlane_b32 s35, v10")
    I("s_mul_i32 s35, s35, 0x9E3779B1")
    I("s_add_u32 s35, s35, 0x7F4A7C15")
    G = 96
    for c in range(4):
        I("v_mov_b32 v%d, s35" % (G + 2 * c + 1))
    for c in range(4):
        d = D + 4 * c
        I("v_add_f32_dpp v%d, v%d, v%d row_ror:8 row_mask:0xf bank_mask:0x3" % (G + 2 * c, d + 2, d + 0))
        I("v_add_f32_dpp v%d, v%d, v%d row_ror:8 row_mask:0xf bank_mask:0xc" % (G + 2 * c, d + 1, d + 3))
    I("v_lshlrev_b32 v3, 13, v3")
    I("v_lshl_add_u32 v3, v6, 5, v3")
    I("s_lshl_b32 s52, s29, 4")
    I("s_add_u32 s53, s52, s30")
    I("s_lshl_b32 s53, s53, 10")
    I("s_lshl_b32 s54, s34, 8")
    I("s_add_u32 s53, s53, s54")
    I("s_add_u32 s53, s53, %d" % QG)
    I("s_mov_b64 exec, 0xffff")
    I("buffer_store_dwordx4 v[%d:%d], v3, s[36:39], s53 offen sc1" % (G, G + 3))
    I("buffer_store_dwordx4 v[%d:%d], v3, s[36:39], s53 offen offset:16 sc1" % (G + 4, G + 7))
    I("s_mov_b64 exec, -1")
    stamp(2)
    I("v_lshrrev_b32 v3, 3, v0")
    I("v_lshlrev_b32 v3, 10, v3")
    I("v_and_b32 v4, 7, v0")
    I("v_lshl_add_u32 v3, v4, 5, v3")
    I("s_lshl_b32 s53, s31, 3")
    I("s_add_u32 s53, s53, s52")
    I("s_lshl_b32 s53, s53, 10")
    I("s_add_u32 s53, s53, s54")
    I("s_add_u32 s53, s53, %d" % QG)
    Q2 = 104
    I("s_mov_b32 s55, %d" % SPIN)
    k.label("L_qpoll")
    I("buffer_load_dwordx4 v[%d:%d], v3, s[36:39], s53 offen sc1" % (Q2, Q2 + 3))
    I("buffer_load_dwordx4 v[%d:%d], v3, s[36:39], s53 offen offset:16 sc1" % (Q2 + 4, Q2 + 7))
    I("s_waitcnt vmcnt(0)")
    I("v_xor_b32 v5, s35, v%d" % (Q2 + 1))
    I("v_xor_b32 v6, s35, v%d" % (Q2 + 3))
    I("v_xor_b32 v7, s35, v%d" % (Q2 + 5))
    I("v_xor_b32 v8, s35, v%d" % (Q2 + 7))
    I("v_or3_b32 v5, v5, v6, v7")
    I("v_or_b32 v5, v5, v8")
    I("v_cmp_ne_u32 vcc, 0, v5")
    I("s_sub_u32 s55, s55, 1")
    I("s_cbranch_scc1 L_qpoll_out")
    I("s_mov_b64 exec, vcc")
    I("s_cbranch_execnz L_qpoll")
    k.label("L_qpoll_out")
    I("s_mov_b64 exec, -1")
    I("v_permlane32_swap_b32 v%d, v%d" % (Q2 + 0, Q2 + 4))
    I("v_permlane32_swap_b32 v%d, v%d" % (Q2 + 2, Q2 + 6))
    I("v_add_f32 v%d, v%d, v%d" % (Q2 + 0, Q2 + 0, Q2 + 4))
    I("v_add_f32 v%d, v%d, v%d" % (Q2 + 2, Q2 + 2, Q2 + 6))
    I("v_permlane16_swap_b32 v%d, v%d" % (Q2 + 0, Q2 + 2))
    I("v_add_f32 v%d, v%d, v%d" % (Q2 + 0, Q2 + 0, Q2 + 2))
    I("v_add_f32_dpp v%d, v%d, v%d row_ror:8 row_mask:0xf bank_mask:0xf" % (Q2 + 1, Q2 + 0, Q2 + 0))
    I("v_cvt_pk_bf16_f32 v%d, v%d, v%d" % (Q2 + 1, Q2 + 1, Q2 + 1))
    I("v_lshl_add_u32 v4, v4, 2, v%d" % g)
    I("s_lshl_b32 s54, s34, 5")
    I("v_add_u32 v4, s54, v4")
    I("v_lshlrev_b32 v4, 1, v4")
    I("ds_write_b16 v4, v%d offset:%d" % (Q2 + 1, L_Q))
    I("s_waitcnt lgkmcnt(0)")
    stamp(3)
    I("s_barrier")

    I("s_mul_i32 s66, s30, 11")
    I("s_add_u32 s66, s66, s29")
    I("s_mov_b32 s67, 0")
    I("s_cmp_lt_u32 s29, 11")
    I("s_cselect_b32 s67, 1, 0")
    I("s_cmp_ge_u32 s66, 86")
    I("s_cselect_b32 s67, 0, s67")
    I("s_sub_u32 s68, s29, 11")
    I("s_cmp_lt_u32 s68, 4")
    I("s_cselect_b32 s67, 2, s67")
    I("s_lshl_b32 s69, s30, 2")
    I("s_add_u32 s68, s68, s69")

    I("s_cmp_lg_u32 s34, 0")
    I("s_cbranch_scc1 L_noinit")
    I("v_mov_b32 v16, -1"); I("v_mov_b32 v17, -1"); I("v_mov_b32 v18, -1"); I("v_mov_b32 v19, -1")
    I("v_lshlrev_b32 v3, 4, v0")
    I("s_lshl_b32 s52, s2, 10")
    I("s_add_u32 s52, s52, %d" % OREC)
    I("buffer_store_dwordx4 v[16:19], v3, s[36:39], s52 offen sc1")
    I("v_lshlrev_b32 v3, 3, v0")
    I("s_lshl_b32 s52, s2, 9")
    I("s_add_u32 s52, s52, %d" % YREC)
    I("buffer_store_dwordx2 v[16:17], v3, s[36:39], s52 offen sc1")
    I("v_lshlrev_b32 v3, 2, v0")
    I("s_lshl_b32 s52, s66, 6")
    I("s_add_u32 s52, s52, %d" % HHBUF)
    I("s_lshl_b32 s53, s68, 6")
    I("s_add_u32 s53, s53, %d" % HBUF)
    I("s_cmp_eq_u32 s67, 2")
    I("s_cselect_b32 s52, s53, s52")
    I("s_cmp_eq_u32 s67, 0")
    I("s_cbranch_scc1 L_init_cnt")
    I("s_mov_b64 exec, 0xffff")
    I("buffer_store_dword v16, v3, s[36:39], s52 offen sc1")
    I("s_mov_b64 exec, -1")
    k.label("L_init_cnt")
    I("s_cmp_lg_u32 s32, 0")
    I("s_cbranch_scc1 L_init_done")
    I("v_mov_b32 v18, 0")
    I("s_lshl_b32 s52, s33, 8")
    I("s_add_u32 s52, s52, %d" % CNT)
    I("s_mov_b64 exec, 1")
    I("buffer_store_dword v18, v3, s[36:39], s52 offen sc1")
    I("s_mov_b64 exec, -1")
    k.label("L_init_done")
    I("s_waitcnt vmcnt(0)")
    I("s_mov_b32 s48, s24"); I("s_mov_b32 s49, s25"); I("s_mov_b32 s50, 256"); I("s_mov_b32 s51, 0x20000")
    I("v_mov_b32 v16, 1")
    I("s_mov_b64 exec, 1")
    I("buffer_atomic_add v16, off, s[48:51], 0 sc1")
    I("s_mov_b64 exec, -1")
    k.label("L_noinit")

    BW = 112
    I("s_mov_b32 s44, s12"); I("s_mov_b32 s45, s13"); I("s_mov_b32 s46, 0x400000"); I("s_mov_b32 s47, 0x20000")
    I("v_lshlrev_b32 v3, 13, v%d" % g)
    I("v_lshl_add_u32 v3, v%d, 3, v3" % n)
    I("s_lshl_b32 s52, s29, 17")
    I("s_lshl_b32 s53, s34, 15")
    I("s_add_u32 s52, s52, s53")
    I("s_lshl_b32 s53, s30, 7")
    I("s_add_u32 s52, s52, s53")
    I("s_add_u32 s53, s52, 4096")
    for j in range(8):
        I("buffer_load_dwordx2 v[%d:%d], v3, s[44:47], s%d offen offset:%d" % (R + 2 * j, R + 2 * j + 1, 52 + (j >> 2), 1024 * (j & 3)))
    I("v_lshrrev_b32 v4, 3, v%d" % n)
    I("v_lshlrev_b32 v4, 2, v4")
    I("v_add_u32 v4, v4, v%d" % g)
    I("v_and_b32 v5, 7, v%d" % n)
    W = 128
    I("s_cmp_eq_u32 s67, 1")
    I("s_cbranch_scc1 L_pf_gu")
    I("s_cmp_eq_u32 s67, 2")
    I("s_cbranch_scc1 L_pf_down")
    I("s_waitcnt vmcnt(0)")
    perm4(R, BW)
    I("s_branch L_pf_done")

    def inplace_perm(blk):
        for jj in range(4):
            I("v_perm_b32 v12, v%d, v%d, s64" % (blk + 4 + jj, blk + jj))
            I("v_perm_b32 v%d, v%d, v%d, s65" % (blk + 4 + jj, blk + 4 + jj, blk + jj))
            I("v_mov_b32 v%d, v12" % (blk + jj))
    k.label("L_pf_gu")
    I("s_mov_b32 s52, 2752*8")
    I("v_mul_lo_u32 v6, v4, s52")
    I("v_lshl_add_u32 v6, v5, 2, v6")
    for mat in range(2):
        I("s_mov_b32 s40, s%d" % (16 + 2 * mat)); I("s_mov_b32 s41, s%d" % (17 + 2 * mat)); I("s_mov_b32 s42, %d" % (512 * 2752)); I("s_mov_b32 s43, 0x20000")
        for ds in range(2):
            I("s_mul_i32 s52, s34, %d" % (128 * 2752))
            I("s_lshl_b32 s53, s66, 5")
            I("s_add_u32 s52, s52, s53")
            if ds: I("s_add_u32 s52, s52, %d" % (64 * 2752))
            blk = W + (ds * 2 + mat) * 8
            for jj in range(8):
                I("buffer_load_dword v%d, v6, s[40:43], s52 offen" % (blk + (jj >> 1) + 4 * (jj & 1)))
                if jj < 7: I("s_add_u32 s52, s52, 2752")
    I("s_waitcnt vmcnt(32)")
    perm4(R, BW)
    I("s_waitcnt vmcnt(0)")
    for blk in range(4): inplace_perm(W + 8 * blk)
    for t in range(4): I("v_mov_b32 v%d, 0x3f803f80" % (16 + t))
    CS = 20
    for tile in range(4):
        mat = tile >> 1; p = tile & 1
        d = 32 + 4 * tile
        I("v_mfma_f32_16x16x32_bf16 v[%d:%d], v[16:19], v[%d:%d], 0" % (d, d + 3, W + mat * 8 + 4 * p, W + mat * 8 + 4 * p + 3))
        I("v_mfma_f32_16x16x32_bf16 v[%d:%d], v[16:19], v[%d:%d], v[%d:%d]" % (d, d + 3, W + (2 + mat) * 8 + 4 * p, W + (2 + mat) * 8 + 4 * p + 3, d, d + 3))
    for tile in range(4):
        d = 32 + 4 * tile
        I("v_add_f32_dpp v%d, v%d, v%d row_ror:8 row_mask:0xf bank_mask:0xf" % (CS + tile, d, d))
    I("s_lshl_b32 s52, s34, 7")
    I("v_lshlrev_b32 v6, 4, v5")
    I("v_add_u32 v6, s52, v6")
    I("s_mov_b64 exec, 0xff")
    I("ds_write_b128 v6, v[%d:%d] offset:%d" % (CS, CS + 3, L_CS))
    I("s_mov_b64 exec, -1")
    I("s_branch L_pf_done")
    k.label("L_pf_down")
    I("v_lshlrev_b32 v6, 13, v4")
    I("v_lshl_add_u32 v6, v5, 2, v6")
    I("s_mov_b32 s40, s20"); I("s_mov_b32 s41, s21"); I("s_mov_b32 s42, %d" % (1376 * 1024)); I("s_mov_b32 s43, 0x20000")
    for i in range(6):
        I("s_lshl_b32 s52, s34, 16")
        I("s_lshl_b32 s53, s68, 5")
        I("s_add_u32 s52, s52, s53")
        if i: I("s_add_u32 s52, s52, %d" % (i * 4 * 65536))
        I("s_add_u32 s53, s52, 4096")
        blk = W + 8 * i
        for jj in range(8):
            I("buffer_load_dword v%d, v6, s[40:43], s%d offen offset:%d" % (blk + (jj >> 1) + 4 * (jj & 1), 52 + (jj >> 2), 1024 * (jj & 3)))
    I("s_mov_b32 s44, s4"); I("s_mov_b32 s45, s5"); I("s_mov_b32 s46, 2048"); I("s_mov_b32 s47, 0x20000")
    I("v_and_b32 v7, 3, v0")
    I("v_lshlrev_b32 v7, 1, v7")
    I("v_lshrrev_b32 v8, 5, v0")
    I("v_add_u32 v7, v7, v8")
    I("v_bfe_u32 v8, v0, 2, 1")
    I("v_lshlrev_b32 v9, 10, v8")
    I("v_lshl_add_u32 v9, v7, 2, v9")
    I("s_lshl_b32 s52, s68, 5")
    I("buffer_load_dword v15, v9, s[44:47], s52 offen")
    I("s_waitcnt vmcnt(49)")
    perm4(R, BW)
    I("s_waitcnt vmcnt(0)")
    for i in range(6): inplace_perm(W + 8 * i)
    k.label("L_pf_done")

    I("s_cmp_lg_u32 s34, 0")
    I("s_cbranch_scc1 L_noflag")
    I("s_mov_b32 s55, %d" % SPIN)
    k.label("L_cntpoll")
    I("buffer_load_dword v16, off, s[48:51], 0 sc1")
    I("s_waitcnt vmcnt(0)")
    I("v_readfirstlane_b32 s52, v16")
    I("s_cmp_ge_u32 s52, 256")
    I("s_cbranch_scc1 L_cntok")
    I("s_sleep 16")
    I("s_sub_u32 s55, s55, 1")
    I("s_cbranch_scc0 L_cntpoll")
    k.label("L_cntok")
    I("v_mov_b32 v16, 1")
    I("v_mov_b32 v17, %d" % L_FLAG)
    I("ds_write_b32 v17, v16")
    I("s_waitcnt lgkmcnt(0)")
    k.label("L_noflag")
    stamp(4)

    I("v_bfe_u32 v6, v%d, 1, 1" % n)
    I("v_and_b32 v7, 1, v%d" % n)
    I("v_lshl_or_b32 v6, v7, 1, v6")
    I("v_and_b32 v7, 4, v%d" % n)
    I("v_or_b32 v6, v6, v7")
    I("v_lshlrev_b32 v6, 10, v6")
    I("v_lshl_add_u32 v7, v%d, 5, v6" % g)
    I("s_lshl_b32 s52, s29, 13")
    I("s_add_u32 s52, s52, %d" % OREC)
    I("s_lshl_b32 s53, s34, 7")
    I("s_add_u32 s53, s53, s52")
    I("s_mov_b32 s55, %d" % SPIN)
    I("s_waitcnt lgkmcnt(0)")
    I("s_barrier")
    stamp(5)
    O = 16
    k.label("L_opoll")
    I("buffer_load_dwordx4 v[%d:%d], v7, s[36:39], s53 offen sc1" % (O, O + 3))
    I("buffer_load_dwordx4 v[%d:%d], v7, s[36:39], s53 offen offset:16 sc1" % (O + 4, O + 7))
    I("buffer_load_dwordx2 v[%d:%d], v6, s[36:39], s52 offen offset:512 sc1" % (O + 8, O + 9))
    I("s_waitcnt vmcnt(0)")
    I("v_max3_u32 v12, v%d, v%d, v%d" % (O, O + 1, O + 2))
    I("v_max3_u32 v13, v%d, v%d, v%d" % (O + 3, O + 4, O + 5))
    I("v_max3_u32 v12, v12, v%d, v%d" % (O + 6, O + 7))
    I("v_max3_u32 v13, v13, v%d, v%d" % (O + 8, O + 9))
    I("v_max_u32 v12, v12, v13")
    I("v_cmp_eq_u32 vcc, -1, v12")
    I("s_sub_u32 s55, s55, 1")
    I("s_cbranch_scc1 L_opoll_out")
    I("s_mov_b64 exec, vcc")
    I("s_cbranch_execnz L_opoll")
    k.label("L_opoll_out")
    I("s_mov_b64 exec, -1")
    stamp(6)
    m_, l_ = O + 8, O + 9
    I("v_max_f32_dpp v12, v%d, v%d quad_perm:[2,3,0,1] row_mask:0xf bank_mask:0xf" % (m_, m_))
    I("v_max_f32_dpp v13, v12, v12 row_ror:4 row_mask:0xf bank_mask:0xf")
    I("v_sub_f32 v12, v%d, v13" % m_)
    I("v_exp_f32 v12, v12")
    I("v_mul_f32 v13, v12, v%d" % l_)
    I("v_add_f32_dpp v14, v13, v13 quad_perm:[2,3,0,1] row_mask:0xf bank_mask:0xf")
    I("v_add_f32_dpp v13, v14, v14 row_ror:4 row_mask:0xf bank_mask:0xf")
    I("v_rcp_f32 v13, v13")
    I("v_mul_f32 v12, v12, v13")
    for t in range(8): I("v_mul_f32 v%d, v%d, v12" % (O + t, O + t))
    for t in range(8): I("v_add_f32_dpp v%d, v%d, v%d quad_perm:[2,3,0,1] row_mask:0xf bank_mask:0xf" % (32 + t, O + t, O + t))
    for t in range(8): I("v_add_f32_dpp v%d, v%d, v%d row_ror:4 row_mask:0xf bank_mask:0xf" % (O + t, 32 + t, 32 + t))
    for t in range(4): I("v_cvt_pk_bf16_f32 v%d, v%d, v%d" % (28 + t, O + 2 * t, O + 2 * t + 1))
    D = 32
    for c in range(4):
        I("v_mfma_f32_16x16x32_bf16 v[%d:%d], v[28:31], v[%d:%d], 0" % (D + 4 * c, D + 4 * c + 3, BW + 4 * c, BW + 4 * c + 3))
    I("s_lshl_b32 s52, s34, 9")
    I("s_add_u32 s52, s52, %d" % L_YP)
    I("v_lshlrev_b32 v13, 4, v%d" % n)
    I("v_add_u32 v13, s52, v13")
    I("s_mov_b64 exec, 0xffff")
    for bb in range(2):
        I("ds_write2_b32 v13, v%d, v%d offset0:%d offset1:%d" % (D + bb, D + 4 + bb, 64 * bb, 64 * bb + 1))
        I("ds_write2_b32 v13, v%d, v%d offset0:%d offset1:%d" % (D + 8 + bb, D + 12 + bb, 64 * bb + 2, 64 * bb + 3))
    I("s_mov_b64 exec, -1")
    I("s_waitcnt lgkmcnt(0)")
    I("s_barrier")
    stamp(7)
    I("s_cmp_lg_u32 s34, 0")
    I("s_cbranch_scc1 L_noY")
    I("v_lshlrev_b32 v12, 4, v0")
    I("s_mov_b64 exec, 0xffffffff")
    for w in range(4):
        I("ds_read_b128 v[%d:%d], v12 offset:%d" % (16 + 4 * w, 19 + 4 * w, L_YP + 512 * w))
    I("s_lshl_b32 s52, s2, 9")
    I("s_add_u32 s52, s52, %d" % YREC)
    I("s_mov_b32 s63, 0x%x" % SENT_CLAMP)
    I("s_waitcnt lgkmcnt(2)")
    for t in range(4): I("v_add_f32 v%d, v%d, v%d" % (16 + t, 16 + t, 20 + t))
    I("s_waitcnt lgkmcnt(0)")
    for t in range(4): I("v_add_f32 v%d, v%d, v%d" % (24 + t, 24 + t, 28 + t))
    for t in range(4): I("v_add_f32 v%d, v%d, v%d" % (16 + t, 16 + t, 24 + t))
    for t in range(4): I("v_min_u32 v%d, s63, v%d" % (16 + t, 16 + t))
    I("buffer_store_dwordx4 v[16:19], v12, s[36:39], s52 offen sc1")
    I("s_mov_b64 exec, -1")
    stamp(8)
    k.label("L_noY")
    I("s_cmp_eq_u32 s67, 1")
    I("s_cbranch_scc1 L_gu")
    I("s_cmp_eq_u32 s67, 2")
    I("s_cbranch_scc1 L_down")
    I("s_branch L_hend")

    def a_addr(dst):
        I("v_bfe_u32 v12, v%d, 1, 1" % n)
        I("v_lshlrev_b32 v12, 2, v12")
        I("v_add_u32 v12, v12, v%d" % g)
        I("v_lshlrev_b32 v12, 5, v12")
        I("v_and_b32 v13, 1, v%d" % n)
        I("v_lshl_add_u32 v%d, v13, 4, v12" % dst)
    def poll(name, loads, regs, execmask):
        I("s_mov_b32 s55, %d" % SPIN)
        if execmask is not None: I("s_mov_b64 exec, %s" % execmask)
        k.label(name)
        for l in loads: I(l)
        I("s_waitcnt vmcnt(0)")
        regs = list(regs)
        acc = [12, 13]
        first = [True, True]
        idx = 0
        while regs:
            a_ = acc[idx & 1]
            if first[idx & 1]:
                if len(regs) >= 3:
                    I("v_max3_u32 v%d, v%d, v%d, v%d" % (a_, regs[0], regs[1], regs[2])); regs = regs[3:]
                    first[idx & 1] = False
                else:
                    a_ = acc[0]
                    I("v_max_u32 v%d, v%d, v%d" % (a_, a_, regs[0])); regs = regs[1:]
            else:
                if len(regs) >= 2:
                    I("v_max3_u32 v%d, v%d, v%d, v%d" % (a_, a_, regs[0], regs[1])); regs = regs[2:]
                else:
                    I("v_max_u32 v%d, v%d, v%d" % (a_, a_, regs[0])); regs = regs[1:]
            idx += 1
        if not first[1]: I("v_max_u32 v12, v12, v13")
        I("v_cmp_eq_u32 vcc, -1, v12")
        I("s_sub_u32 s55, s55, 1")
        I("s_cbranch_scc1 %s_out" % name)
        I("s_mov_b64 exec, vcc")
        I("s_cbranch_execnz %s" % name)
        k.label(name + "_out")
        I("s_mov_b64 exec, -1")
    AMASK = "s[70:71]"

    k.label("L_gu")
    AD = 64
    a_addr(14)
    I("s_mov_b32 s70, 0x000f000f"); I("s_mov_b32 s71, 0x000f000f")
    I("v_cmp_eq_u32 vcc, 4, v%d" % n)
    I("v_mov_b32 v15, 0x3f803f80")
    for t in range(8): I("v_cndmask_b32 v%d, 0, v15, vcc" % (AD + t))
    I("s_lshl_b32 s52, s34, 9")
    I("s_add_u32 s52, s52, %d" % HBUF)
    CSUM = 72
    I("v_and_b32 v5, 7, v0")
    I("v_lshlrev_b32 v6, 4, v5")
    for w in range(4):
        I("ds_read_b128 v[%d:%d], v6 offset:%d" % (32 + 4 * w, 35 + 4 * w, L_CS + 128 * w))
    I("v_and_b32 v7, 1, v0")
    I("v_lshlrev_b32 v7, 4, v7")
    I("v_bfe_u32 v8, v0, 1, 1")
    I("v_lshl_add_u32 v7, v8, 2, v7")
    I("v_bfe_u32 v8, v0, 4, 1")
    I("v_lshl_add_u32 v7, v8, 3, v7")
    I("s_lshl_b32 s53, s34, 5")
    I("v_add_u32 v7, s53, v7")
    I("v_lshlrev_b32 v8, 4, v%d" % n)
    I("s_lshl_b32 s53, s34, 8")
    I("v_add_u32 v8, s53, v8")
    I("s_waitcnt lgkmcnt(0)")
    for t in range(4):
        I("v_add_f32 v%d, v%d, v%d" % (32 + t, 32 + t, 36 + t))
        I("v_add_f32 v%d, v%d, v%d" % (40 + t, 40 + t, 44 + t))
        I("v_add_f32 v%d, v%d, v%d" % (CSUM + t, 32 + t, 40 + t))
    poll("L_hpoll",
         ["buffer_load_dwordx4 v[%d:%d], v14, s[36:39], s52 offen offset:%d sc1" % (AD + 4 * ds, AD + 4 * ds + 3, 256 * ds) for ds in range(2)],
         range(AD, AD + 8), AMASK)
    stamp(9)
    DG = 32
    for ds in range(2):
        for tile in range(4):
            mat = tile >> 1; p = tile & 1
            d = DG + 4 * tile
            bb = W + (ds * 2 + mat) * 8 + 4 * p
            I("v_mfma_f32_16x16x32_bf16 v[%d:%d], v[%d:%d], v[%d:%d], %s" % (d, d + 3, AD + 4 * ds, AD + 4 * ds + 3, bb, bb + 3, "0" if ds == 0 else "v[%d:%d]" % (d, d + 3)))
        d = DG + 16
        I("v_mfma_f32_16x16x32_bf16 v[%d:%d], v[%d:%d], v[%d:%d], %s" % (d, d + 3, AD + 4 * ds, AD + 4 * ds + 3, AD + 4 * ds, AD + 4 * ds + 3, "0" if ds == 0 else "v[%d:%d]" % (d, d + 3)))
    for tile in range(4):
        d = DG + 4 * tile
        I("v_add_f32_dpp v%d, v%d, v%d row_ror:8 row_mask:0xf bank_mask:0x3" % (52 + tile, d + 2, d + 0))
        I("v_add_f32_dpp v%d, v%d, v%d row_ror:8 row_mask:0xf bank_mask:0xc" % (52 + tile, d + 1, d + 3))
    S = DG + 16
    I("s_mov_b64 s[72:73], 2"); I("s_mov_b64 s[74:75], 4"); I("s_mov_b64 s[76:77], 8")
    I("v_cndmask_b32 v56, v%d, v%d, s[72:73]" % (S, S + 1))
    I("v_cndmask_b32 v56, v56, v%d, s[74:75]" % (S + 2))
    I("v_cndmask_b32 v56, v56, v%d, s[76:77]" % (S + 3))
    I("s_mov_b64 exec, 0xffff")
    I("ds_write_b128 v8, v[52:55] offset:%d" % L_GUD)
    I("s_mov_b64 exec, 0x000f000f")
    I("ds_write_b32 v7, v56 offset:%d" % L_STAT)
    I("s_mov_b64 exec, -1")
    I("s_waitcnt lgkmcnt(0)")
    I("s_barrier")
    stamp(10)
    I("s_cmp_lg_u32 s34, 0")
    I("s_cbranch_scc1 L_hend")
    I("v_lshlrev_b32 v6, 4, v0")
    I("v_bfe_u32 v7, v0, 3, 1")
    I("v_lshlrev_b32 v8, 4, v7")
    I("s_mov_b64 exec, 0xffff")
    for w in range(4):
        I("ds_read_b128 v[%d:%d], v8 offset:%d" % (48 + 4 * w, 51 + 4 * w, L_STAT + 32 * w))
    for w in range(4):
        I("ds_read_b128 v[%d:%d], v6 offset:%d" % (32 + 4 * w, 35 + 4 * w, L_GUD + 256 * w))
    I("v_lshrrev_b32 v9, 2, v5")
    I("v_lshl_add_u32 v8, v9, 5, v8")
    I("v_and_b32 v9, 3, v5")
    I("v_lshl_add_u32 v8, v9, 2, v8")
    I("s_lshl_b32 s52, s66, 6")
    I("s_add_u32 s52, s52, %d" % HHBUF)
    I("s_waitcnt lgkmcnt(4)")
    for w in range(4):
        I("v_add_f32 v%d, v%d, v%d" % (48 + 4 * w, 48 + 4 * w, 49 + 4 * w))
        I("v_add_f32 v%d, v%d, v%d" % (50 + 4 * w, 50 + 4 * w, 51 + 4 * w))
    I("v_add_f32 v48, v48, v52"); I("v_add_f32 v50, v50, v54")
    I("v_add_f32 v56, v56, v60"); I("v_add_f32 v58, v58, v62")
    I("v_add_f32 v48, v48, v56"); I("v_add_f32 v50, v50, v58")
    I("v_mul_f32 v50, 0x3b000000, v50")
    I("v_mul_f32 v48, 0x3b000000, v48")
    I("v_fma_f32 v48, -v50, v50, v48")
    I("v_max_f32 v48, 0, v48")
    rnd(48, 48)
    I("v_add_f32 v48, 0x3727c5ac, v48")
    rnd(48, 48)
    I("v_sqrt_f32 v48, v48")
    rnd(48, 48)
    I("v_rcp_f32 v48, v48")
    rnd(50, 50)
    I("s_waitcnt lgkmcnt(0)")
    for t in range(4):
        I("v_add_f32 v%d, v%d, v%d" % (32 + t, 32 + t, 36 + t))
        I("v_add_f32 v%d, v%d, v%d" % (40 + t, 40 + t, 44 + t))
        I("v_add_f32 v%d, v%d, v%d" % (32 + t, 32 + t, 40 + t))
        I("v_fma_f32 v%d, -v50, v%d, v%d" % (32 + t, CSUM + t, 32 + t))
        I("v_mul_f32 v%d, v%d, v48" % (32 + t, 32 + t))
    I("v_cvt_pk_bf16_f32 v36, v32, v33")
    I("v_cvt_pk_bf16_f32 v37, v34, v35")
    I("v_lshlrev_b32 v32, 16, v36")
    I("v_and_b32 v33, 0xffff0000, v36")
    I("v_lshlrev_b32 v34, 16, v37")
    I("v_and_b32 v35, 0xffff0000, v37")
    I("v_max_f32 v32, 0, v32")
    I("v_max_f32 v33, 0, v33")
    I("v_mul_f32 v32, v32, v34")
    I("v_mul_f32 v33, v33, v35")
    I("v_cvt_pk_bf16_f32 v36, v32, v33")
    I("s_mov_b32 s63, 0x%x" % SENT_CLAMP)
    I("v_min_u32 v36, s63, v36")
    I("buffer_store_dword v36, v8, s[36:39], s52 offen sc1")
    I("s_mov_b64 exec, -1")
    I("s_branch L_hend")

    k.label("L_down")
    I("s_cmp_lg_u32 s34, 1")
    I("s_cbranch_scc1 L_nost3")
    I("v_lshrrev_b32 v5, 3, v0")
    I("v_lshlrev_b32 v5, 12, v5")
    I("v_bfe_u32 v6, v0, 2, 1")
    I("v_lshl_add_u32 v5, v6, 8, v5")
    I("v_and_b32 v7, 3, v0")
    I("v_lshl_add_u32 v5, v7, 4, v5")
    I("s_lshr_b32 s52, s68, 2")
    I("s_lshl_b32 s52, s52, 9")
    I("s_and_b32 s53, s68, 3")
    I("s_lshl_b32 s53, s53, 6")
    I("s_add_u32 s52, s52, s53")
    I("s_add_u32 s52, s52, %d" % YREC)
    for t in range(1, 4): I("s_add_u32 s%d, s52, %d" % (55 + t, 32768 * t))
    Y = 16
    poll("L_ypoll",
         ["buffer_load_dwordx4 v[%d:%d], v5, s[36:39], s%d offen sc1" % (Y + 4 * t, Y + 4 * t + 3, 52 if t == 0 else 55 + t) for t in range(4)],
         range(Y, Y + 16), None)
    for t in range(4):
        I("v_add_f32 v%d, v%d, v%d" % (Y + t, Y + t, Y + 4 + t))
        I("v_add_f32 v%d, v%d, v%d" % (Y + 8 + t, Y + 8 + t, Y + 12 + t))
    for t in range(4): I("v_add_f32 v%d, v%d, v%d" % (Y + t, Y + t, Y + 8 + t))
    I("v_permlane32_swap_b32 v%d, v%d" % (Y + 0, Y + 2))
    I("v_permlane32_swap_b32 v%d, v%d" % (Y + 1, Y + 3))
    I("v_add_f32 v%d, v%d, v%d" % (Y + 0, Y + 0, Y + 2))
    I("v_add_f32 v%d, v%d, v%d" % (Y + 1, Y + 1, Y + 3))
    I("v_mov_b32 v20, v%d" % (Y + 0))
    I("v_mov_b32 v21, v%d" % (Y + 1))
    I("v_permlane16_swap_b32 v20, v%d" % (Y + 0))
    I("v_permlane16_swap_b32 v21, v%d" % (Y + 1))
    I("v_add_f32 v%d, v%d, v20" % (Y + 0, Y + 0))
    I("v_add_f32 v%d, v%d, v21" % (Y + 1, Y + 1))
    I("v_add_f32_dpp v20, v%d, v%d row_ror:8 row_mask:0xf bank_mask:0xf" % (Y + 0, Y + 0))
    I("v_add_f32_dpp v21, v%d, v%d row_ror:8 row_mask:0xf bank_mask:0xf" % (Y + 1, Y + 1))
    I("v_cvt_pk_bf16_f32 v22, v20, v21")
    I("v_lshlrev_b32 v20, 16, v22")
    I("v_and_b32 v21, 0xffff0000, v22")
    I("v_lshlrev_b32 v23, 16, v15")
    I("v_and_b32 v24, 0xffff0000, v15")
    I("v_add_f32 v20, v20, v23")
    I("v_add_f32 v21, v21, v24")
    I("v_cvt_pk_bf16_f32 v22, v20, v21")
    I("s_mov_b32 s63, 0x%x" % SENT_CLAMP)
    I("v_min_u32 v22, s63, v22")
    I("v_lshrrev_b32 v8, 5, v0")
    I("v_lshrrev_b32 v9, 1, v7")
    I("v_lshlrev_b32 v9, 5, v9")
    I("v_lshl_add_u32 v9, v6, 4, v9")
    I("v_and_b32 v10, 1, v7")
    I("v_lshl_add_u32 v10, v10, 1, v8")
    I("v_lshl_add_u32 v9, v10, 2, v9")
    I("v_lshl_add_u32 v10, v7, 1, v8")
    I("v_lshl_add_u32 v10, v6, 3, v10")
    I("v_lshlrev_b32 v10, 2, v10")
    I("s_lshl_b32 s52, s68, 6")
    I("s_add_u32 s52, s52, %d" % HBUF)
    I("s_mov_b32 s70, 0xff"); I("s_mov_b32 s71, 0xff")
    I("s_mov_b64 exec, s[70:71]")
    I("buffer_store_dword v22, v9, s[36:39], s52 offen sc1")
    I("ds_write_b32 v10, v22 offset:%d" % L_HB)
    I("s_mov_b64 exec, -1")
    stamp(8)
    k.label("L_nost3")
    AD = 64
    a_addr(14)
    I("s_mov_b32 s70, 0x000f000f"); I("s_mov_b32 s71, 0x000f000f")
    I("s_add_u32 s40, s26, %d" % HHBUF)
    I("s_addc_u32 s41, s27, 0")
    I("s_mov_b32 s42, 5504")
    I("s_mov_b32 s43, 0x20000")
    for t in range(24): I("v_mov_b32 v%d, 0" % (AD + t))
    for i in range(6):
        I("s_add_u32 s%d, s34, %d" % (56 + i, 4 * i))
        I("s_lshl_b32 s%d, s%d, 8" % (56 + i, 56 + i))
    I("v_lshlrev_b32 v8, 3, v%d" % n)
    I("s_lshl_b32 s53, s34, 7")
    I("v_add_u32 v8, s53, v8")
    poll("L_hhpoll",
         ["buffer_load_dwordx4 v[%d:%d], v14, s[40:43], s%d offen sc1" % (AD + 4 * i, AD + 4 * i + 3, 56 + i) for i in range(6)],
         range(AD, AD + 24), AMASK)
    stamp(9)
    for i in range(6):
        for p in range(2):
            d = 32 + 4 * p
            bb = W + 8 * i + 4 * p
            I("v_mfma_f32_16x16x32_bf16 v[%d:%d], v[%d:%d], v[%d:%d], %s" % (d, d + 3, AD + 4 * i, AD + 4 * i + 3, bb, bb + 3, "0" if i == 0 else "v[%d:%d]" % (d, d + 3)))
    for p in range(2):
        d = 32 + 4 * p
        I("v_add_f32_dpp v%d, v%d, v%d row_ror:8 row_mask:0xf bank_mask:0x3" % (40 + p, d + 2, d + 0))
        I("v_add_f32_dpp v%d, v%d, v%d row_ror:8 row_mask:0xf bank_mask:0xc" % (40 + p, d + 1, d + 3))
    I("s_mov_b64 exec, 0xffff")
    I("ds_write_b64 v8, v[40:41] offset:%d" % L_DP)
    I("s_mov_b64 exec, -1")
    I("s_waitcnt lgkmcnt(0)")
    I("s_barrier")
    stamp(10)
    I("s_cmp_lg_u32 s34, 0")
    I("s_cbranch_scc1 L_hend")
    I("v_lshlrev_b32 v6, 3, v0")
    I("v_lshlrev_b32 v7, 2, v0")
    I("s_mov_b64 exec, 0xffff")
    for w in range(4):
        I("ds_read_b64 v[%d:%d], v6 offset:%d" % (32 + 2 * w, 33 + 2 * w, L_DP + 128 * w))
    I("ds_read_b32 v40, v7 offset:%d" % L_HB)
    I("v_bfe_u32 v8, v0, 3, 1")
    I("v_lshlrev_b32 v8, 10, v8")
    I("v_and_b32 v9, 7, v0")
    I("v_lshl_add_u32 v8, v9, 2, v8")
    I("s_lshl_b32 s52, s68, 5")
    I("s_mov_b32 s44, s22"); I("s_mov_b32 s45, s23"); I("s_mov_b32 s46, 2048"); I("s_mov_b32 s47, 0x20000")
    I("s_waitcnt lgkmcnt(0)")
    I("v_add_f32 v32, v32, v34"); I("v_add_f32 v33, v33, v35")
    I("v_add_f32 v36, v36, v38"); I("v_add_f32 v37, v37, v39")
    I("v_add_f32 v32, v32, v36"); I("v_add_f32 v33, v33, v37")
    I("v_cvt_pk_bf16_f32 v34, v32, v33")
    I("v_lshlrev_b32 v32, 16, v34")
    I("v_and_b32 v33, 0xffff0000, v34")
    I("v_lshlrev_b32 v35, 16, v40")
    I("v_and_b32 v36, 0xffff0000, v40")
    I("v_add_f32 v32, v32, v35")
    I("v_add_f32 v33, v33, v36")
    I("v_cvt_pk_bf16_f32 v34, v32, v33")
    I("buffer_store_dword v34, v8, s[44:47], s52 offen")
    I("s_cmp_lg_u32 s68, 0")
    I("s_cbranch_scc1 L_noepoch")
    I("v_mov_b32 v35, s35")
    I("s_mov_b64 exec, 1")
    I("buffer_store_dword v35, off, s[36:39], 0 offset:%d sc1" % EPOCH)
    k.label("L_noepoch")
    I("s_mov_b64 exec, -1")
    k.label("L_hend")
    stamp(11)
    stamp_flush()
    k.label("L_end")
    I("s_endpgm")

    body = k.finish()
    for p in k.problems: print("HAZARD-EDGE:", p)
    nv = 208
    out = [HEADER.rstrip()]
    out.append("; Override launch geometry by editing the next line (default: block=256,")
    out.append("; @launch grid=(256,1,1) block=(512,1,1) lds=%d" % LDS_BYTES)
    out.append('.amdgcn_target "amdgcn-amd-amdhsa--gfx950"')
    out.append(".text")
    out.append(".globl %s" % KNAME)
    out.append(".p2align 8")
    out.append(".type %s,@function" % KNAME)
    out.append("%s:" % KNAME)
    for ln in body:
        out.append(ln if ln.endswith(":") else "    " + ln)
    out.append('.section .rodata,"a"')
    out.append(".p2align 6")
    out.append(".amdhsa_kernel %s" % KNAME)
    out.append("  .amdhsa_next_free_vgpr %d" % nv)
    out.append("  .amdhsa_next_free_sgpr 102")
    out.append("  .amdhsa_accum_offset %d" % nv)
    out.append("  .amdhsa_group_segment_fixed_size 0")
    out.append("  .amdhsa_kernarg_size 96")
    out.append("  .amdhsa_user_sgpr_count 2")
    out.append("  .amdhsa_user_sgpr_kernarg_segment_ptr 1")
    out.append("  .amdhsa_system_sgpr_workgroup_id_x 1")
    out.append(".end_amdhsa_kernel")
    open(path, "w").write("\n".join(out) + "\n")

if __name__ == "__main__":
    import argparse
    ap = argparse.ArgumentParser()
    ap.add_argument("out")
    ap.add_argument("--stamps", action="store_true")
    ap.add_argument("--NS", type=int, default=28)
    ap.add_argument("--CAP", type=int, default=8)
    ap.add_argument("--b0", action="store_true")
    a = ap.parse_args()
    gen(a.out, NS=a.NS, CAP=a.CAP, stamps=a.stamps, b0=a.b0)
```

```python
import sys
from asmlib import K

KNAME = "sequential_preLN__gqa_block_cached__glu_gated_reglu__decode_kernel"
REF = "sequential_preLN__gqa_block_cached__glu_gated_reglu__decode.s.ref"
HEADER = open(REF).read().split("; Override")[0]

EPOCH = 0
CNT = 0x1000
QG = 0x10000
OREC = 0x100000
YREC = 0x140000
HBUF = 0x160000
HHBUF = 0x161000
DBG = 0x200000
WSREC = 0x300000
L_Q = 0x000
L_FLAG = 0x100
L_MLP = 0x120
L_PART = 0x200
L_YP = 0xA00
L_GUD = 0x1200
L_STAT = 0x1A00
L_CS = 0x1B00
L_DP = 0x1200
L_HB = 0x1F00
LDS_BYTES = 0x2000

SENT_CLAMP = 0xFFFFFFFE
SPIN = 1 << 14

def gen(path, NS=26, CAP=8, stamps=False, NPARK=4, XP=(2, 6, 10, 14), b0=False, nopref=False, nocomp=False, prio=0):
    NFILL = NPARK + 2
    XF = (NS - NFILL - 4) & ~1
    assert XF > max(XP[:NPARK])
    k = K()
    I = k.I
    vST = 250
    nst = [0]
    def stamp(idx):
        if not stamps: return
        I("s_memrealtime s[98:99]")
        I("s_waitcnt lgkmcnt(0)")
        I("v_writelane_b32 v%d, s98, %d" % (vST, idx))
    apend = []
    def astamp(idx):
        if not stamps: return
        r = 78 + 2 * len(apend)
        assert r <= 96
        I("s_memrealtime s[%d:%d]" % (r, r + 1))
        apend.append((idx, r))
    def acollect(keep=0):
        if not stamps: return
        I("s_waitcnt lgkmcnt(0)")
        for idx, r in apend: I("v_writelane_b32 v%d, s%d, %d" % (vST, r, idx))
        del apend[keep:]
    def stamp_flush():
        if not stamps: return
        I("s_mov_b64 exec, -1")
        I("s_getreg_b32 s98, hwreg(HW_REG_XCC_ID)")
        I("v_writelane_b32 v%d, s98, 63" % vST)
        I("s_lshl_b32 s98, s2, 3")
        I("s_add_u32 s98, s98, s28")
        I("s_lshl_b32 s98, s98, 8")
        I("s_add_u32 s98, s98, %d" % DBG)
        I("v_lshlrev_b32 v%d, 2, v0" % (vST + 1))
        I("buffer_store_dword v%d, v%d, s[36:39], s98 offen" % (vST, vST + 1))

    def rnd(dst, src):
        I("v_cvt_pk_bf16_f32 v%d, v%d, v%d" % (dst, src, src))
        I("v_and_b32 v%d, 0xffff0000, v%d" % (dst, dst))

    def swap_reduce(op, v, t):
        I("v_mov_b32 v%d, v%d" % (t, v))
        I("v_permlane16_swap_b32 v%d, v%d" % (t, v))
        I("%s v%d, v%d, v%d" % (op, v, v, t))
        I("v_mov_b32 v%d, v%d" % (t, v))
        I("v_permlane32_swap_b32 v%d, v%d" % (t, v))
        I("%s v%d, v%d, v%d" % (op, v, v, t))

    I("s_cmp_ge_u32 s2, 256")
    I("s_cbranch_scc1 L_end")
    I("s_load_dwordx16 s[4:19], s[0:1], 0")
    I("s_load_dwordx8 s[20:27], s[0:1], 64")
    I("v_lshrrev_b32 v1, 6, v0")
    I("v_and_b32 v0, 63, v0")
    I("v_readfirstlane_b32 s28, v1")
    I("s_lshr_b32 s29, s2, 3")
    I("s_and_b32 s30, s2, 7")
    I("s_bfe_u32 s31, s2, 0x10001")
    I("s_bfe_u32 s32, s2, 0x10002")
    I("s_lshl_b32 s32, s32, 1")
    I("s_and_b32 s33, s2, 1")
    I("s_or_b32 s32, s32, s33")
    I("s_lshl_b32 s33, s31, 5")
    I("s_add_u32 s33, s33, s29")
    I("s_mov_b32 s66, s33")
    I("s_sub_u32 s68, s33, 44")
    I("s_cmp_lt_u32 s33, 43")
    I("s_cselect_b32 s67, 1, 0")
    I("s_cmp_lt_u32 s68, 16")
    I("s_cselect_b32 s67, 2, s67")
    I("s_bfe_u32 s69, s29, 0x20001")
    I("s_cmp_lg_u32 s69, s32")
    I("s_cselect_b32 s67, 0, s67")
    if stamps:
        I("v_mov_b32 v%d, 0" % vST)
        I("s_memrealtime s[78:79]")
    I("s_waitcnt lgkmcnt(0)")
    if stamps:
        I("v_writelane_b32 v%d, s78, 0" % vST)
        astamp(12)
    I("s_mov_b32 s36, s26")
    I("s_mov_b32 s37, s27")
    I("s_mov_b32 s38, %d" % WSREC)
    I("s_mov_b32 s39, 0x20000")
    I("s_cmp_ge_u32 s28, 4")
    I("s_cbranch_scc1 L_helper")

    vOff = 1; vQ = 2; vAcc = 6; vM = 14; vL = 15
    a = [16, 17, 18, 19]; u0 = 20; u1 = 21; vw = 22; vt = 23; vsc = 24; vmx = 25; vmn = 26; vp = 27; val = 28
    vplo = 29; vphi = 30; vT = [31, 32]; vCA = 33
    SA, SB = 36, 68
    PK = [100 + 32 * i for i in range(NPARK)]
    P0 = 100
    RD = 2
    I("v_lshlrev_b32 v%d, 4, v0" % vOff)
    I("s_lshl_b32 s52, s33, 21")
    I("s_add_u32 s40, s6, s52")
    I("s_addc_u32 s41, s7, 0")
    I("s_mov_b32 s42, 0x200000")
    I("s_mov_b32 s43, 0x20000")
    I("s_add_u32 s44, s8, s52")
    I("s_addc_u32 s45, s9, 0")
    I("s_mov_b32 s46, 0x200000")
    I("s_mov_b32 s47, 0x20000")
    I("s_mov_b32 s48, s26")
    I("s_mov_b32 s49, s27")
    I("s_mov_b32 s50, 0")
    I("s_mov_b32 s51, 0x20000")
    I("s_lshl_b32 s60, s32, 2")
    I("s_add_u32 s60, s60, s28")
    I("s_lshl_b32 s61, s33, 8")
    I("s_add_u32 s61, s61, %d" % CNT)
    I("v_mov_b32 v%d, s61" % vCA)
    I("s_cmp_lg_u32 s28, 0")
    I("s_cbranch_scc1 L_noinit")
    I("v_mov_b32 v16, -1"); I("v_mov_b32 v17, -1"); I("v_mov_b32 v18, -1"); I("v_mov_b32 v19, -1")
    I("s_lshl_b32 s52, s2, 10")
    I("s_add_u32 s52, s52, %d" % OREC)
    I("buffer_store_dwordx4 v[16:19], v%d, s[36:39], s52 offen sc1" % vOff)
    I("v_lshlrev_b32 v3, 3, v0")
    I("s_lshl_b32 s52, s2, 9")
    I("s_add_u32 s52, s52, %d" % YREC)
    I("buffer_store_dwordx2 v[16:17], v3, s[36:39], s52 offen sc1")
    I("v_lshlrev_b32 v3, 2, v0")
    I("s_lshl_b32 s52, s66, 7")
    I("s_add_u32 s52, s52, %d" % HHBUF)
    I("s_lshl_b32 s53, s68, 7")
    I("s_add_u32 s53, s53, %d" % HBUF)
    I("s_cmp_eq_u32 s67, 2")
    I("s_cselect_b32 s52, s53, s52")
    I("s_cmp_eq_u32 s67, 0")
    I("s_cselect_b32 s52, %d, s52" % WSREC)
    I("s_mov_b64 exec, 0xffffffff")
    I("buffer_store_dword v16, v3, s[36:39], s52 offen sc1")
    I("v_mov_b32 v20, 0")
    I("s_cmp_eq_u32 s32, 0")
    I("s_cselect_b32 s52, s61, %d" % WSREC)
    I("s_mov_b64 exec, 1")
    I("buffer_store_dword v20, v3, s[36:39], s52 offen sc1")
    I("s_mov_b64 exec, -1")
    k.label("L_noinit")
    if b0: I("s_barrier")
    outstanding = [0]
    def paced():
        if outstanding[0] >= CAP:
            I("s_waitcnt vmcnt(%d)" % (CAP - 1))
            outstanding[0] = CAP - 1
        outstanding[0] += 1
    def ld(base, kv, j, soff="s52"):
        r = base + 16 * kv + 4 * j
        I("buffer_load_dwordx4 v[%d:%d], v%d, %s, %s offen offset:%d nt" % (r, r + 3, vOff, "s[40:43]" if kv == 0 else "s[44:47]", soff, 1024 * j))
    def issue_atomic(slot):
        I("s_cmp_lt_u32 s54, %d" % NS)
        I("s_cselect_b32 s50, 0, %d" % WSREC)
        I("v_mov_b32 v%d, 1" % vT[slot])
        I("s_mov_b64 exec, 1")
        I("buffer_atomic_add v%d, v%d, s[48:51], 0 offen sc0 sc1" % (vT[slot], vCA))
        I("s_mov_b64 exec, -1")
        I("s_add_u32 s54, s54, 1")
    for ci, base in enumerate(PK + [SA, SB]):
        I("s_add_u32 s52, s60, %d" % (16 * ci))
        I("s_lshl_b32 s52, s52, 12")
        if ci == NPARK: I("s_mov_b32 s54, %d" % NFILL)
        if ci >= NPARK:
            paced(); issue_atomic(ci - NPARK)
        for kv in range(2):
            for j in range(4):
                paced(); ld(base, kv, j)
    I("s_cmp_lg_u32 s28, 0")
    I("s_cbranch_scc1 L_nocnt")
    I("s_waitcnt vmcnt(%d)" % min(8 * NFILL + 2, CAP, 63))
    I("s_mov_b32 s64, s24"); I("s_mov_b32 s65, s25"); I("s_mov_b32 s66, 256"); I("s_mov_b32 s67, 0x20000")
    I("v_mov_b32 v16, 1")
    I("s_mov_b64 exec, 1")
    I("buffer_atomic_add v16, off, s[64:67], 0 sc1")
    I("s_mov_b64 exec, -1")
    k.label("L_nocnt")
    I("s_mov_b32 s53, %d" % NFILL)
    I("s_mov_b32 s55, 1")
    I("s_mov_b32 s56, 1")
    I("s_mov_b32 s57, 0")
    for i in range(8): I("v_mov_b32 v%d, 0" % (vAcc + i))
    I("v_mov_b32 v%d, 0xf149f2ca" % vM)
    I("v_mov_b32 v%d, 0" % vL)
    acollect(keep=1)
    stamp(1)
    I("s_barrier")
    I("v_and_b32 v%d, 15, v0" % vt)
    I("v_lshlrev_b32 v%d, 4, v%d" % (vt, vt))
    I("ds_read_b128 v[%d:%d], v%d offset:%d" % (vQ, vQ + 3, vt, L_Q))
    I("s_waitcnt lgkmcnt(0)")
    stamp(2)

    def consume(base, wait=None, reload=None):
        if nocomp:
            for kv in range(2):
                for j in range(4):
                    if wait: wait(kv, j)
                    r = base + 16 * kv + 4 * j
                    I("v_xor_b32 v%d, v%d, v%d" % (vAcc + j, r, vAcc + j))
                    if reload: reload(kv, j)
            return
        for j in range(4):
            if wait: wait(0, j)
            r = base + 4 * j
            I("v_dot2_f32_bf16 v%d, v%d, v%d, 0" % (a[j], r, vQ))
            for t in range(1, 4):
                I("v_dot2_f32_bf16 v%d, v%d, v%d, v%d" % (a[j], r + t, vQ + t, a[j]))
            if reload: reload(0, j)
        I("v_add_f32_dpp v%d, v%d, v%d row_ror:8 row_mask:0xf bank_mask:0x3" % (u0, a[0], a[0]))
        I("v_add_f32_dpp v%d, v%d, v%d row_ror:8 row_mask:0xf bank_mask:0xc" % (u0, a[2], a[2]))
        I("v_add_f32_dpp v%d, v%d, v%d row_ror:8 row_mask:0xf bank_mask:0x3" % (u1, a[1], a[1]))
        I("v_add_f32_dpp v%d, v%d, v%d row_ror:8 row_mask:0xf bank_mask:0xc" % (u1, a[3], a[3]))
        I("v_add_f32_dpp v%d, v%d, v%d row_half_mirror row_mask:0xf bank_mask:0x5" % (vw, u0, u0))
        I("v_add_f32_dpp v%d, v%d, v%d row_half_mirror row_mask:0xf bank_mask:0xa" % (vw, u1, u1))
        I("v_add_f32_dpp v%d, v%d, v%d quad_perm:[1,0,3,2] row_mask:0xf bank_mask:0xf" % (vt, vw, vw))
        I("v_add_f32_dpp v%d, v%d, v%d quad_perm:[2,3,0,1] row_mask:0xf bank_mask:0xf" % (vw, vt, vt))
        rnd(vw, vw)
        I("v_mul_f32 v%d, 0x3db504f3, v%d" % (vw, vw))
        rnd(vw, vw)
        I("v_mul_f32 v%d, 0x3fb8aa3b, v%d" % (vsc, vw))
        I("v_max_f32_dpp v%d, v%d, v%d row_ror:4 row_mask:0xf bank_mask:0xf" % (vmx, vsc, vsc))
        I("v_max_f32_dpp v%d, v%d, v%d row_ror:8 row_mask:0xf bank_mask:0xf" % (vmn, vmx, vmx))
        I("v_max_f32 v%d, v%d, v%d" % (vmn, vmn, vM))
        I("v_sub_f32 v%d, v%d, v%d" % (vp, vsc, vmn))
        I("v_sub_f32 v%d, v%d, v%d" % (val, vM, vmn))
        I("v_exp_f32 v%d, v%d" % (vp, vp))
        I("v_exp_f32 v%d, v%d" % (val, val))
        I("v_mov_b32 v%d, v%d" % (vM, vmn))
        I("v_cvt_pk_bf16_f32 v%d, v%d, 0" % (vplo, vp))
        I("v_lshlrev_b32 v%d, 16, v%d" % (vphi, vplo))
        I("v_fma_f32 v%d, v%d, v%d, v%d" % (vL, vL, val, vphi))
        for i in range(8):
            I("v_mul_f32 v%d, v%d, v%d" % (vAcc + i, vAcc + i, val))
        for j in range(4):
            if wait: wait(1, j)
            r = base + 16 + 4 * j
            for t in range(4):
                I("v_dot2c_f32_bf16_dpp v%d, v%d, v%d row_newbcast:%d row_mask:0xf bank_mask:0xf" % (vAcc + 2 * t, vplo, r + t, 4 * j))
                I("v_dot2c_f32_bf16_dpp v%d, v%d, v%d row_newbcast:%d row_mask:0xf bank_mask:0xf" % (vAcc + 2 * t + 1, vphi, r + t, 4 * j))
            if reload: reload(1, j)

    k.label("L_loop")
    for slot, base in enumerate((SA, SB)):
        if slot == 0:
            if stamps:
                I("s_and_b32 s62, s57, 7")
                I("s_cmp_lg_u32 s62, 0")
                I("s_cbranch_scc1 L_nost")
                I("s_memrealtime s[98:99]")
                I("s_lshr_b32 s62, s57, 3")
                I("s_add_u32 m0, s62, 20")
                I("s_waitcnt lgkmcnt(0)")
                I("s_nop 1")
                I("v_writelane_b32 v%d, s98, m0" % vST)
                k.label("L_nost")
            for pi in range(NPARK):
                I("s_cmp_eq_u32 s57, %d" % XP[pi])
                I("s_cbranch_scc1 L_park%d" % pi)
                k.label("L_park%d_ret" % pi)
            I("s_cmp_eq_u32 s57, %d" % XF)
            I("s_cbranch_scc1 L_flag")
            k.label("L_flag_ret")
        I("s_cmp_eq_u32 s%d, 0" % (55 + slot))
        I("s_cbranch_scc1 L_fin")
        I("s_waitcnt vmcnt(%d)" % (9 * RD - 2))
        I("v_readfirstlane_b32 s52, v%d" % vT[slot])
        I("s_lshl_b32 s62, s53, 4")
        I("s_add_u32 s62, s62, s60")
        I("s_add_u32 s52, s52, %d" % (NS * 16))
        I("s_cmp_lt_u32 s53, %d" % NS)
        I("s_cselect_b32 s52, s62, s52")
        I("s_add_u32 s53, s53, 1")
        I("s_cmp_lt_u32 s52, 512")
        I("s_cselect_b32 s42, 0x200000, 0")
        I("s_cselect_b32 s46, 0x200000, 0")
        I("s_cselect_b32 s%d, 1, 0" % (55 + slot))
        I("s_lshl_b32 s52, s52, 12")
        issue_atomic(slot)
        def wait(kv, j):
            if not (kv == 0 and j == 0):
                I("s_waitcnt vmcnt(%d)" % (9 * RD - 1))
        consume(base, wait, lambda kv, j, base=base: ld(base, kv, j))
        I("s_add_u32 s57, s57, 1")
    I("s_branch L_loop")
    for pi in range(NPARK):
        k.label("L_park%d" % pi)
        if pi == 1: stamp(25)
        consume(PK[pi])
        if pi == 1: stamp(26)
        I("s_branch L_park%d_ret" % pi)
    k.label("L_flag")
    I("s_mov_b32 s62, %d" % SPIN)
    I("v_mov_b32 v%d, %d" % (vt, L_FLAG))
    k.label("L_flagspin")
    I("ds_read_b32 v%d, v%d" % (vw, vt))
    I("s_waitcnt lgkmcnt(0)")
    I("v_readfirstlane_b32 s63, v%d" % vw)
    I("s_cmp_eq_u32 s63, 1")
    I("s_cbranch_scc1 L_flag_ret")
    I("s_sleep 8")
    I("s_sub_u32 s62, s62, 1")
    I("s_cbranch_scc0 L_flagspin")
    I("s_branch L_flag_ret")

    k.label("L_fin")
    stamp(3)
    I("v_add_f32_dpp v%d, v%d, v%d row_ror:4 row_mask:0xf bank_mask:0xf" % (vt, vL, vL))
    I("v_mov_b32 v%d, v%d" % (vmn, vM))
    I("v_add_f32_dpp v%d, v%d, v%d row_ror:8 row_mask:0xf bank_mask:0xf" % (vL, vt, vt))
    swap_reduce("v_max_f32", vmn, vt)
    I("v_sub_f32 v%d, v%d, v%d" % (val, vM, vmn))
    I("v_exp_f32 v%d, v%d" % (val, val))
    I("v_mul_f32 v%d, v%d, v%d" % (vL, vL, val))
    for i in range(8):
        I("v_mul_f32 v%d, v%d, v%d" % (vAcc + i, vAcc + i, val))
    swap_reduce("v_add_f32", vL, vt)
    for i in range(4):
        I("v_permlane32_swap_b32 v%d, v%d" % (vAcc + i, vAcc + i + 4))
    for i in range(4):
        I("v_add_f32 v%d, v%d, v%d" % (vAcc + i, vAcc + i, vAcc + i + 4))
    I("v_permlane16_swap_b32 v%d, v%d" % (vAcc + 0, vAcc + 2))
    I("v_permlane16_swap_b32 v%d, v%d" % (vAcc + 1, vAcc + 3))
    I("v_add_f32 v%d, v%d, v%d" % (vAcc + 0, vAcc + 0, vAcc + 2))
    I("v_add_f32 v%d, v%d, v%d" % (vAcc + 1, vAcc + 1, vAcc + 3))
    I("v_and_b32 v%d, 15, v0" % vt)
    I("v_lshrrev_b32 v%d, 4, v0" % vw)
    I("v_lshlrev_b32 v%d, 5, v%d" % (vt, vt))
    I("v_lshl_add_u32 v%d, v%d, 3, v%d" % (vt, vw, vt))
    I("s_lshl_b32 s62, s28, 9")
    I("v_add_u32 v%d, s62, v%d" % (vt, vt))
    I("ds_write_b64 v%d, v[%d:%d] offset:%d" % (vt, vAcc, vAcc + 1, L_PART))
    I("v_mov_b32 v%d, v%d" % (vM, vmn))
    I("s_lshl_b32 s62, s28, 3")
    I("v_mov_b32 v%d, s62" % vt)
    I("s_mov_b64 exec, 1")
    I("ds_write_b64 v%d, v[%d:%d] offset:%d" % (vt, vM, vL, L_MLP))
    I("s_mov_b64 exec, -1")
    I("s_waitcnt lgkmcnt(0)")
    I("s_barrier")
    I("s_cmp_lg_u32 s28, 0")
    I("s_cbranch_scc1 L_sdone")
    Z = P0
    I("v_mov_b32 v20, 0")
    I("v_lshlrev_b32 v21, 3, v0")
    I("ds_read_b128 v[%d:%d], v20 offset:%d" % (Z, Z + 3, L_MLP))
    I("ds_read_b128 v[%d:%d], v20 offset:%d" % (Z + 4, Z + 7, L_MLP + 16))
    for w in range(4):
        I("ds_read_b64 v[%d:%d], v21 offset:%d" % (Z + 8 + 2 * w, Z + 9 + 2 * w, L_PART + 512 * w))
    I("s_lshl_b32 s62, s2, 10")
    I("s_add_u32 s62, s62, %d" % OREC)
    I("s_waitcnt lgkmcnt(4)")
    MM = Z + 16; LL = Z + 17; O0 = Z + 18; O1 = Z + 19
    I("v_max_f32 v%d, v%d, v%d" % (MM, Z, Z + 2))
    I("v_max3_f32 v%d, v%d, v%d, v%d" % (MM, MM, Z + 4, Z + 6))
    for w in range(4):
        I("v_sub_f32 v%d, v%d, v%d" % (Z + 2 * w, Z + 2 * w, MM))
    for w in range(4):
        I("v_exp_f32 v%d, v%d" % (Z + 2 * w, Z + 2 * w))
    I("v_mul_f32 v%d, v%d, v%d" % (LL, Z, Z + 1))
    for w in range(1, 4):
        I("v_fmac_f32 v%d, v%d, v%d" % (LL, Z + 2 * w, Z + 2 * w + 1))
    I("s_waitcnt lgkmcnt(0)")
    I("v_mul_f32 v%d, v%d, v%d" % (O0, Z, Z + 8))
    I("v_mul_f32 v%d, v%d, v%d" % (O1, Z, Z + 9))
    for w in range(1, 4):
        I("v_fmac_f32 v%d, v%d, v%d" % (O0, Z + 2 * w, Z + 8 + 2 * w))
        I("v_fmac_f32 v%d, v%d, v%d" % (O1, Z + 2 * w, Z + 9 + 2 * w))
    I("s_mov_b32 s63, 0x%x" % SENT_CLAMP)
    for r in (MM, LL, O0, O1):
        I("v_min_u32 v%d, s63, v%d" % (r, r))
    I("buffer_store_dwordx2 v[%d:%d], v21, s[36:39], s62 offen sc1" % (O0, O1))
    I("s_mov_b64 exec, 1")
    I("buffer_store_dwordx2 v[%d:%d], v20, s[36:39], s62 offen offset:512 sc1" % (MM, LL))
    I("s_mov_b64 exec, -1")
    stamp(4)
    k.label("L_sdone")
    stamp_flush()
    I("s_endpgm")

    k.label("L_helper")
    if prio: I("s_setprio %d" % prio)
    I("s_sub_u32 s34, s28, 4")
    g = 1; n = 2
    I("v_lshrrev_b32 v%d, 4, v0" % g)
    I("v_and_b32 v%d, 15, v0" % n)
    I("s_mov_b32 s44, s10"); I("s_mov_b32 s45, s11"); I("s_mov_b32 s46, 0x400000"); I("s_mov_b32 s47, 0x20000")
    I("s_mov_b32 s40, s4"); I("s_mov_b32 s41, s5"); I("s_mov_b32 s42, 2048"); I("s_mov_b32 s43, 0x20000")
    I("v_lshrrev_b32 v3, 3, v%d" % n)
    I("v_lshlrev_b32 v4, 2, v3")
    I("v_add_u32 v4, v4, v%d" % g)
    I("v_lshlrev_b32 v5, 16, v4")
    I("v_and_b32 v6, 7, v%d" % n)
    I("v_lshl_add_u32 v5, v6, 3, v5")
    I("s_lshl_b32 s52, s30, 19")
    I("s_lshl_b32 s53, s29, 8")
    I("s_add_u32 s52, s52, s53")
    I("s_lshl_b32 s53, s34, 6")
    I("s_add_u32 s52, s52, s53")
    R = 16
    for j in range(8):
        I("buffer_load_dwordx2 v[%d:%d], v5, s[44:47], s52 offen" % (R + 2 * j, R + 2 * j + 1))
        if j < 7: I("s_add_u32 s52, s52, 8192")
    astamp(15)
    XFULL = 48
    I("v_and_b32 v7, 1, v0")
    I("v_lshlrev_b32 v7, 10, v7")
    I("v_lshrrev_b32 v8, 1, v0")
    I("v_lshl_add_u32 v8, v8, 5, v7")
    I("buffer_load_dwordx4 v[%d:%d], v8, s[40:43], 0 offen" % (XFULL, XFULL + 3))
    I("buffer_load_dwordx4 v[%d:%d], v8, s[40:43], 0 offen offset:16" % (XFULL + 4, XFULL + 7))
    XA = 56
    I("v_bfe_u32 v9, v%d, 1, 1" % n)
    I("v_lshlrev_b32 v9, 2, v9")
    I("v_add_u32 v9, v9, v%d" % g)
    I("v_lshl_add_u32 v9, v9, 4, v7")
    I("s_lshl_b32 s53, s30, 7")
    I("buffer_load_dwordx4 v[%d:%d], v9, s[40:43], s53 offen" % (XA, XA + 3))
    I("buffer_load_dword v10, off, s[36:39], 0 offset:%d sc1" % EPOCH)
    if b0: I("s_barrier")
    I("v_mov_b32 v11, 0")
    I("v_mov_b32 v12, %d" % L_FLAG)
    I("ds_write_b32 v12, v11")
    I("s_mov_b32 s64, 0x05040100")
    I("s_mov_b32 s65, 0x07060302")
    astamp(1)
    F = 64
    I("s_waitcnt vmcnt(2)")
    astamp(14)
    for t in range(8):
        I("v_lshlrev_b32 v%d, 16, v%d" % (F + 2 * t, XFULL + t))
        I("v_and_b32 v%d, 0xffff0000, v%d" % (F + 2 * t + 1, XFULL + t))
    def lane_par_reduce(v, t):
        I("v_add_f32_dpp v%d, v%d, v%d row_ror:2 row_mask:0xf bank_mask:0xf" % (t, v, v))
        I("v_add_f32_dpp v%d, v%d, v%d row_ror:4 row_mask:0xf bank_mask:0xf" % (v, t, t))
        I("v_add_f32_dpp v%d, v%d, v%d row_ror:8 row_mask:0xf bank_mask:0xf" % (t, v, v))
        I("v_mov_b32 v%d, v%d" % (v, t))
        swap_reduce("v_add_f32", v, t)
    I("v_add_f32 v12, v%d, v%d" % (F, F + 1))
    I("v_add_f32 v13, v%d, v%d" % (F + 2, F + 3))
    for t in range(4, 16, 2):
        I("v_add_f32 v12, v12, v%d" % (F + t))
        I("v_add_f32 v13, v13, v%d" % (F + t + 1))
    I("v_add_f32 v12, v12, v13")
    lane_par_reduce(12, 13)
    I("v_mul_f32 v12, 0x3b000000, v12")
    I("v_mov_b32 v14, 0")
    I("v_mov_b32 v15, 0")
    for t in range(16):
        I("v_sub_f32 v%d, v%d, v12" % (F + t, F + t))
    for t in range(0, 16, 2):
        I("v_fmac_f32 v14, v%d, v%d" % (F + t, F + t))
        I("v_fmac_f32 v15, v%d, v%d" % (F + t + 1, F + t + 1))
    I("v_add_f32 v14, v14, v15")
    lane_par_reduce(14, 13)
    I("v_mul_f32 v14, 0x3b000000, v14")
    rnd(14, 14)
    I("v_add_f32 v14, 0x3727c5ac, v14")
    rnd(14, 14)
    I("v_sqrt_f32 v14, v14")
    rnd(14, 14)
    I("v_rcp_f32 v14, v14")
    rnd(12, 12)
    A = 60
    I("s_waitcnt vmcnt(1)")
    for t in range(4):
        I("v_lshlrev_b32 v%d, 16, v%d" % (F + 0, XA + t))
        I("v_and_b32 v%d, 0xffff0000, v%d" % (F + 1, XA + t))
        I("v_sub_f32 v%d, v%d, v12" % (F + 0, F + 0))
        I("v_sub_f32 v%d, v%d, v12" % (F + 1, F + 1))
        I("v_cvt_pk_bf16_f32 v%d, v%d, v%d" % (F + 2, F + 0, F + 1))
        I("v_lshlrev_b32 v%d, 16, v%d" % (F + 0, F + 2))
        I("v_and_b32 v%d, 0xffff0000, v%d" % (F + 1, F + 2))
        I("v_mul_f32 v%d, v%d, v14" % (F + 0, F + 0))
        I("v_mul_f32 v%d, v%d, v14" % (F + 1, F + 1))
        I("v_cvt_pk_bf16_f32 v%d, v%d, v%d" % (A + t, F + 0, F + 1))
    Bc = 32
    def perm4(src, dst):
        for c in range(4):
            for jj in range(4):
                I("v_perm_b32 v%d, v%d, v%d, s%d" % (dst + 4 * c + jj, src + 2 * (2 * jj + 1) + (c >> 1), src + 2 * (2 * jj) + (c >> 1), 64 + (c & 1)))
    astamp(16)
    perm4(R, Bc)
    D = 80
    for c in range(4):
        I("v_mfma_f32_16x16x32_bf16 v[%d:%d], v[%d:%d], v[%d:%d], 0" % (D + 4 * c, D + 4 * c + 3, A, A + 3, Bc + 4 * c, Bc + 4 * c + 3))
    I("s_waitcnt vmcnt(0)")
    I("v_readfirstlane_b32 s35, v10")
    I("s_mul_i32 s35, s35, 0x9E3779B1")
    I("s_add_u32 s35, s35, 0x7F4A7C15")
    G = 96
    for c in range(4):
        I("v_mov_b32 v%d, s35" % (G + 2 * c + 1))
    for c in range(4):
        d = D + 4 * c
        I("v_add_f32_dpp v%d, v%d, v%d row_ror:8 row_mask:0xf bank_mask:0x3" % (G + 2 * c, d + 2, d + 0))
        I("v_add_f32_dpp v%d, v%d, v%d row_ror:8 row_mask:0xf bank_mask:0xc" % (G + 2 * c, d + 1, d + 3))
    I("v_lshlrev_b32 v3, 13, v3")
    I("v_lshl_add_u32 v3, v6, 5, v3")
    I("s_lshl_b32 s52, s29, 4")
    I("s_add_u32 s53, s52, s30")
    I("s_lshl_b32 s53, s53, 10")
    I("s_lshl_b32 s54, s34, 8")
    I("s_add_u32 s53, s53, s54")
    I("s_add_u32 s53, s53, %d" % QG)
    I("s_mov_b64 exec, 0xffff")
    I("buffer_store_dwordx4 v[%d:%d], v3, s[36:39], s53 offen sc1" % (G, G + 3))
    I("buffer_store_dwordx4 v[%d:%d], v3, s[36:39], s53 offen offset:16 sc1" % (G + 4, G + 7))
    I("s_mov_b64 exec, -1")
    astamp(2)
    I("v_lshrrev_b32 v3, 3, v0")
    I("v_lshlrev_b32 v3, 10, v3")
    I("v_and_b32 v4, 7, v0")
    I("v_lshl_add_u32 v3, v4, 5, v3")
    I("s_lshl_b32 s53, s31, 3")
    I("s_add_u32 s53, s53, s52")
    I("s_lshl_b32 s53, s53, 10")
    I("s_add_u32 s53, s53, s54")
    I("s_add_u32 s53, s53, %d" % QG)
    Q2 = 104
    I("s_mov_b32 s55, %d" % SPIN)
    k.label("L_qpoll")
    I("buffer_load_dwordx4 v[%d:%d], v3, s[36:39], s53 offen sc1" % (Q2, Q2 + 3))
    I("buffer_load_dwordx4 v[%d:%d], v3, s[36:39], s53 offen offset:16 sc1" % (Q2 + 4, Q2 + 7))
    I("s_waitcnt vmcnt(0)")
    I("v_xor_b32 v5, s35, v%d" % (Q2 + 1))
    I("v_xor_b32 v6, s35, v%d" % (Q2 + 3))
    I("v_xor_b32 v7, s35, v%d" % (Q2 + 5))
    I("v_xor_b32 v8, s35, v%d" % (Q2 + 7))
    I("v_or3_b32 v5, v5, v6, v7")
    I("v_or_b32 v5, v5, v8")
    I("v_cmp_ne_u32 vcc, 0, v5")
    I("s_sub_u32 s55, s55, 1")
    I("s_cbranch_scc1 L_qpoll_out")
    I("s_mov_b64 exec, vcc")
    I("s_cbranch_execnz L_qpoll")
    k.label("L_qpoll_out")
    I("s_mov_b64 exec, -1")
    I("v_permlane32_swap_b32 v%d, v%d" % (Q2 + 0, Q2 + 4))
    I("v_permlane32_swap_b32 v%d, v%d" % (Q2 + 2, Q2 + 6))
    I("v_add_f32 v%d, v%d, v%d" % (Q2 + 0, Q2 + 0, Q2 + 4))
    I("v_add_f32 v%d, v%d, v%d" % (Q2 + 2, Q2 + 2, Q2 + 6))
    I("v_permlane16_swap_b32 v%d, v%d" % (Q2 + 0, Q2 + 2))
    I("v_add_f32 v%d, v%d, v%d" % (Q2 + 0, Q2 + 0, Q2 + 2))
    I("v_add_f32_dpp v%d, v%d, v%d row_ror:8 row_mask:0xf bank_mask:0xf" % (Q2 + 1, Q2 + 0, Q2 + 0))
    I("v_cvt_pk_bf16_f32 v%d, v%d, v%d" % (Q2 + 1, Q2 + 1, Q2 + 1))
    I("v_lshl_add_u32 v4, v4, 2, v%d" % g)
    I("s_lshl_b32 s54, s34, 5")
    I("v_add_u32 v4, s54, v4")
    I("v_lshlrev_b32 v4, 1, v4")
    I("ds_write_b16 v4, v%d offset:%d" % (Q2 + 1, L_Q))
    I("s_waitcnt lgkmcnt(0)")
    astamp(3)
    I("s_barrier")

    acollect()
    I("s_cmp_lg_u32 s34, 0")
    I("s_cbranch_scc1 L_noflag")
    I("s_mov_b32 s48, s24"); I("s_mov_b32 s49, s25"); I("s_mov_b32 s50, 256"); I("s_mov_b32 s51, 0x20000")
    I("s_mov_b32 s55, %d" % SPIN)
    k.label("L_cntpoll")
    I("buffer_load_dword v16, off, s[48:51], 0 sc1")
    I("s_waitcnt vmcnt(0)")
    I("v_readfirstlane_b32 s52, v16")
    I("s_cmp_ge_u32 s52, 256")
    I("s_cbranch_scc1 L_cntok")
    I("s_sleep 16")
    I("s_sub_u32 s55, s55, 1")
    I("s_cbranch_scc0 L_cntpoll")
    k.label("L_cntok")
    I("v_mov_b32 v16, 1")
    I("v_mov_b32 v17, %d" % L_FLAG)
    I("ds_write_b32 v17, v16")
    I("s_waitcnt lgkmcnt(0)")
    k.label("L_noflag")
    stamp(13)

    BW = 112
    I("s_mov_b32 s44, s12"); I("s_mov_b32 s45, s13"); I("s_mov_b32 s46, 0x400000"); I("s_mov_b32 s47, 0x20000")
    I("v_lshlrev_b32 v3, 13, v%d" % g)
    I("v_lshl_add_u32 v3, v%d, 3, v3" % n)
    I("s_lshl_b32 s52, s29, 17")
    I("s_lshl_b32 s53, s34, 15")
    I("s_add_u32 s52, s52, s53")
    I("s_lshl_b32 s53, s30, 7")
    I("s_add_u32 s52, s52, s53")
    I("s_add_u32 s53, s52, 4096")
    for j in range(8):
        I("buffer_load_dwordx2 v[%d:%d], v3, s[44:47], s%d offen offset:%d" % (R + 2 * j, R + 2 * j + 1, 52 + (j >> 2), 1024 * (j & 3)))
    I("v_lshrrev_b32 v4, 3, v%d" % n)
    I("v_lshlrev_b32 v4, 2, v4")
    I("v_add_u32 v4, v4, v%d" % g)
    I("v_and_b32 v5, 7, v%d" % n)
    W = 128
    I("s_cmp_eq_u32 s67, 1")
    I("s_cbranch_scc1 L_pf_gu")
    I("s_cmp_eq_u32 s67, 2")
    I("s_cbranch_scc1 L_pf_down")
    I("s_waitcnt vmcnt(0)")
    perm4(R, BW)
    I("s_branch L_pf_done")

    k.label("L_pf_gu")
    I("s_mov_b32 s52, 2752*8")
    I("v_mul_lo_u32 v6, v4, s52")
    I("v_lshl_add_u32 v6, v5, 3, v6")
    for mat in range(2):
        I("s_mov_b32 s40, s%d" % (16 + 2 * mat)); I("s_mov_b32 s41, s%d" % (17 + 2 * mat)); I("s_mov_b32 s42, %d" % (512 * 2752)); I("s_mov_b32 s43, 0x20000")
        for ds in range(2):
            I("s_mul_i32 s52, s34, %d" % (128 * 2752))
            I("s_lshl_b32 s53, s66, 6")
            I("s_add_u32 s52, s52, s53")
            if ds: I("s_add_u32 s52, s52, %d" % (64 * 2752))
            raw = W + 16 * (ds * 2 + mat + 1)
            for jj in range(8):
                if not nopref: I("buffer_load_dwordx2 v[%d:%d], v6, s[40:43], s52 offen" % (raw + 2 * jj, raw + 2 * jj + 1))
                if jj < 7: I("s_add_u32 s52, s52, 2752")
    I("s_waitcnt vmcnt(%d)" % (0 if nopref else 32))
    perm4(R, BW)
    I("s_waitcnt vmcnt(0)")
    for i in range(4): perm4(W + 16 * (i + 1), W + 16 * i)
    for t in range(4): I("v_mov_b32 v%d, 0x3f803f80" % (16 + t))
    CS = 20
    for mat in range(2):
        for c in range(4):
            d = 32 + 4 * (mat * 4 + c)
            b0_ = W + 16 * mat + 4 * c
            b1_ = W + 16 * (2 + mat) + 4 * c
            I("v_mfma_f32_16x16x32_bf16 v[%d:%d], v[16:19], v[%d:%d], 0" % (d, d + 3, b0_, b0_ + 3))
            I("v_mfma_f32_16x16x32_bf16 v[%d:%d], v[16:19], v[%d:%d], v[%d:%d]" % (d, d + 3, b1_, b1_ + 3, d, d + 3))
    for t in range(8):
        d = 32 + 4 * t
        I("v_add_f32_dpp v%d, v%d, v%d row_ror:8 row_mask:0xf bank_mask:0xf" % (CS + t, d, d))
    I("s_lshl_b32 s52, s34, 8")
    I("v_lshlrev_b32 v6, 4, v5")
    I("v_add_u32 v6, s52, v6")
    I("s_mov_b64 exec, 0xff")
    I("ds_write_b128 v6, v[%d:%d] offset:%d" % (CS, CS + 3, L_CS))
    I("ds_write_b128 v6, v[%d:%d] offset:%d" % (CS + 4, CS + 7, L_CS + 128))
    I("s_mov_b64 exec, -1")
    I("s_branch L_pf_done")
    k.label("L_pf_down")
    I("v_lshlrev_b32 v6, 13, v4")
    I("v_lshl_add_u32 v6, v5, 3, v6")
    I("s_mov_b32 s40, s20"); I("s_mov_b32 s41, s21"); I("s_mov_b32 s42, %d" % (1376 * 1024)); I("s_mov_b32 s43, 0x20000")
    for i in range(6):
        I("s_lshl_b32 s52, s34, 16")
        I("s_lshl_b32 s53, s68, 6")
        I("s_add_u32 s52, s52, s53")
        if i: I("s_add_u32 s52, s52, %d" % (i * 4 * 65536))
        I("s_add_u32 s53, s52, 4096")
        raw = W + 16 * (i + 1)
        for jj in range(8):
            if not nopref: I("buffer_load_dwordx2 v[%d:%d], v6, s[40:43], s%d offen offset:%d" % (raw + 2 * jj, raw + 2 * jj + 1, 52 + (jj >> 2), 1024 * (jj & 3)))
    I("s_mov_b32 s44, s4"); I("s_mov_b32 s45, s5"); I("s_mov_b32 s46, 2048"); I("s_mov_b32 s47, 0x20000")
    I("v_and_b32 v7, 1, v0")
    I("v_lshl_add_u32 v7, v7, 2, v%d" % g)
    I("v_lshlrev_b32 v7, 1, v7")
    I("v_bfe_u32 v8, v0, 1, 1")
    I("v_lshl_add_u32 v9, v8, 10, v7")
    I("s_lshl_b32 s52, s68, 6")
    I("s_lshl_b32 s53, s34, 4")
    I("s_add_u32 s52, s52, s53")
    I("buffer_load_ushort v15, v9, s[44:47], s52 offen")
    I("s_waitcnt vmcnt(%d)" % (1 if nopref else 49))
    perm4(R, BW)
    I("s_waitcnt vmcnt(0)")
    for i in range(6): perm4(W + 16 * (i + 1), W + 16 * i)
    I("v_lshlrev_b32 v15, 16, v15")
    k.label("L_pf_done")
    stamp(4)

    I("v_bfe_u32 v6, v%d, 1, 1" % n)
    I("v_and_b32 v7, 1, v%d" % n)
    I("v_lshl_or_b32 v6, v7, 1, v6")
    I("v_and_b32 v7, 4, v%d" % n)
    I("v_or_b32 v6, v6, v7")
    I("v_lshlrev_b32 v6, 10, v6")
    I("v_lshl_add_u32 v7, v%d, 5, v6" % g)
    I("s_lshl_b32 s52, s29, 13")
    I("s_add_u32 s52, s52, %d" % OREC)
    I("s_lshl_b32 s53, s34, 7")
    I("s_add_u32 s53, s53, s52")
    I("s_mov_b32 s55, %d" % SPIN)
    I("s_waitcnt lgkmcnt(0)")
    I("s_barrier")
    stamp(5)
    O = 16
    k.label("L_opoll")
    I("buffer_load_dwordx4 v[%d:%d], v7, s[36:39], s53 offen sc1" % (O, O + 3))
    I("buffer_load_dwordx4 v[%d:%d], v7, s[36:39], s53 offen offset:16 sc1" % (O + 4, O + 7))
    I("buffer_load_dwordx2 v[%d:%d], v6, s[36:39], s52 offen offset:512 sc1" % (O + 8, O + 9))
    I("s_waitcnt vmcnt(0)")
    I("v_max3_u32 v12, v%d, v%d, v%d" % (O, O + 1, O + 2))
    I("v_max3_u32 v13, v%d, v%d, v%d" % (O + 3, O + 4, O + 5))
    I("v_max3_u32 v12, v12, v%d, v%d" % (O + 6, O + 7))
    I("v_max3_u32 v13, v13, v%d, v%d" % (O + 8, O + 9))
    I("v_max_u32 v12, v12, v13")
    I("v_cmp_eq_u32 vcc, -1, v12")
    I("s_sub_u32 s55, s55, 1")
    I("s_cbranch_scc1 L_opoll_out")
    I("s_mov_b64 exec, vcc")
    I("s_cbranch_execnz L_opoll")
    k.label("L_opoll_out")
    I("s_mov_b64 exec, -1")
    stamp(6)
    m_, l_ = O + 8, O + 9
    I("v_max_f32_dpp v12, v%d, v%d quad_perm:[2,3,0,1] row_mask:0xf bank_mask:0xf" % (m_, m_))
    I("v_max_f32_dpp v13, v12, v12 row_ror:4 row_mask:0xf bank_mask:0xf")
    I("v_sub_f32 v12, v%d, v13" % m_)
    I("v_exp_f32 v12, v12")
    I("v_mul_f32 v13, v12, v%d" % l_)
    I("v_add_f32_dpp v14, v13, v13 quad_perm:[2,3,0,1] row_mask:0xf bank_mask:0xf")
    I("v_add_f32_dpp v13, v14, v14 row_ror:4 row_mask:0xf bank_mask:0xf")
    I("v_rcp_f32 v13, v13")
    I("v_mul_f32 v12, v12, v13")
    for t in range(8): I("v_mul_f32 v%d, v%d, v12" % (O + t, O + t))
    for t in range(8): I("v_add_f32_dpp v%d, v%d, v%d quad_perm:[2,3,0,1] row_mask:0xf bank_mask:0xf" % (32 + t, O + t, O + t))
    for t in range(8): I("v_add_f32_dpp v%d, v%d, v%d row_ror:4 row_mask:0xf bank_mask:0xf" % (O + t, 32 + t, 32 + t))
    for t in range(4): I("v_cvt_pk_bf16_f32 v%d, v%d, v%d" % (28 + t, O + 2 * t, O + 2 * t + 1))
    D = 32
    for c in range(4):
        I("v_mfma_f32_16x16x32_bf16 v[%d:%d], v[28:31], v[%d:%d], 0" % (D + 4 * c, D + 4 * c + 3, BW + 4 * c, BW + 4 * c + 3))
    I("s_lshl_b32 s52, s34, 9")
    I("s_add_u32 s52, s52, %d" % L_YP)
    I("v_lshlrev_b32 v13, 4, v%d" % n)
    I("v_add_u32 v13, s52, v13")
    I("s_mov_b64 exec, 0xffff")
    for bb in range(2):
        I("ds_write2_b32 v13, v%d, v%d offset0:%d offset1:%d" % (D + bb, D + 4 + bb, 64 * bb, 64 * bb + 1))
        I("ds_write2_b32 v13, v%d, v%d offset0:%d offset1:%d" % (D + 8 + bb, D + 12 + bb, 64 * bb + 2, 64 * bb + 3))
    I("s_mov_b64 exec, -1")
    I("s_waitcnt lgkmcnt(0)")
    I("s_barrier")
    stamp(7)
    I("s_cmp_lg_u32 s34, 0")
    I("s_cbranch_scc1 L_noY")
    I("v_lshlrev_b32 v12, 4, v0")
    I("s_mov_b64 exec, 0xffffffff")
    for w in range(4):
        I("ds_read_b128 v[%d:%d], v12 offset:%d" % (16 + 4 * w, 19 + 4 * w, L_YP + 512 * w))
    I("s_lshl_b32 s52, s2, 9")
    I("s_add_u32 s52, s52, %d" % YREC)
    I("s_mov_b32 s63, 0x%x" % SENT_CLAMP)
    I("s_waitcnt lgkmcnt(2)")
    for t in range(4): I("v_add_f32 v%d, v%d, v%d" % (16 + t, 16 + t, 20 + t))
    I("s_waitcnt lgkmcnt(0)")
    for t in range(4): I("v_add_f32 v%d, v%d, v%d" % (24 + t, 24 + t, 28 + t))
    for t in range(4): I("v_add_f32 v%d, v%d, v%d" % (16 + t, 16 + t, 24 + t))
    for t in range(4): I("v_min_u32 v%d, s63, v%d" % (16 + t, 16 + t))
    I("buffer_store_dwordx4 v[16:19], v12, s[36:39], s52 offen sc1")
    I("s_mov_b64 exec, -1")
    stamp(8)
    k.label("L_noY")
    I("s_cmp_eq_u32 s67, 1")
    I("s_cbranch_scc1 L_gu")
    I("s_cmp_eq_u32 s67, 2")
    I("s_cbranch_scc1 L_down")
    I("s_branch L_hend")

    def a_addr(dst):
        I("v_bfe_u32 v12, v%d, 1, 1" % n)
        I("v_lshlrev_b32 v12, 2, v12")
        I("v_add_u32 v12, v12, v%d" % g)
        I("v_lshlrev_b32 v12, 5, v12")
        I("v_and_b32 v13, 1, v%d" % n)
        I("v_lshl_add_u32 v%d, v13, 4, v12" % dst)
    def poll(name, loads, regs, execmask):
        I("s_mov_b32 s55, %d" % SPIN)
        if execmask is not None: I("s_mov_b64 exec, %s" % execmask)
        k.label(name)
        for l in loads: I(l)
        I("s_waitcnt vmcnt(0)")
        regs = list(regs)
        acc = [12, 13]
        first = [True, True]
        idx = 0
        while regs:
            a_ = acc[idx & 1]
            if first[idx & 1]:
                if len(regs) >= 3:
                    I("v_max3_u32 v%d, v%d, v%d, v%d" % (a_, regs[0], regs[1], regs[2])); regs = regs[3:]
                    first[idx & 1] = False
                else:
                    a_ = acc[0]
                    I("v_max_u32 v%d, v%d, v%d" % (a_, a_, regs[0])); regs = regs[1:]
            else:
                if len(regs) >= 2:
                    I("v_max3_u32 v%d, v%d, v%d, v%d" % (a_, a_, regs[0], regs[1])); regs = regs[2:]
                else:
                    I("v_max_u32 v%d, v%d, v%d" % (a_, a_, regs[0])); regs = regs[1:]
            idx += 1
        if not first[1]: I("v_max_u32 v12, v12, v13")
        I("v_cmp_eq_u32 vcc, -1, v12")
        I("s_sub_u32 s55, s55, 1")
        I("s_cbranch_scc1 %s_out" % name)
        I("s_mov_b64 exec, vcc")
        I("s_cbranch_execnz %s" % name)
        k.label(name + "_out")
        I("s_mov_b64 exec, -1")
    AMASK = "s[70:71]"

    k.label("L_gu")
    AD = 64
    a_addr(14)
    I("s_mov_b32 s70, 0x000f000f"); I("s_mov_b32 s71, 0x000f000f")
    I("v_cmp_eq_u32 vcc, 4, v%d" % n)
    I("v_mov_b32 v15, 0x3f803f80")
    for t in range(8): I("v_cndmask_b32 v%d, 0, v15, vcc" % (AD + t))
    I("s_lshl_b32 s52, s34, 9")
    I("s_add_u32 s52, s52, %d" % HBUF)
    CSUM = 72
    I("v_and_b32 v6, 31, v0")
    I("v_lshlrev_b32 v6, 2, v6")
    I("v_add_u32 v6, %d, v6" % L_CS)
    for w in range(4):
        I("ds_read2_b32 v[%d:%d], v6 offset0:%d offset1:%d" % (32 + 2 * w, 33 + 2 * w, 64 * w, 64 * w + 32))
    I("v_and_b32 v7, 1, v0")
    I("v_lshlrev_b32 v7, 4, v7")
    I("v_bfe_u32 v8, v0, 1, 1")
    I("v_lshl_add_u32 v7, v8, 2, v7")
    I("v_bfe_u32 v8, v0, 4, 1")
    I("v_lshl_add_u32 v7, v8, 3, v7")
    I("s_lshl_b32 s53, s34, 5")
    I("v_add_u32 v7, s53, v7")
    I("v_lshlrev_b32 v8, 4, v%d" % n)
    I("s_lshl_b32 s53, s34, 9")
    I("v_add_u32 v8, s53, v8")
    I("s_waitcnt lgkmcnt(0)")
    for t in range(2):
        I("v_add_f32 v%d, v%d, v%d" % (32 + t, 32 + t, 34 + t))
        I("v_add_f32 v%d, v%d, v%d" % (36 + t, 36 + t, 38 + t))
        I("v_add_f32 v%d, v%d, v%d" % (CSUM + t, 32 + t, 36 + t))
    I("v_lshlrev_b32 v9, 2, v0")
    I("v_add_u32 v9, %d, v9" % L_GUD)
    I("v_lshrrev_b32 v10, 5, v0")
    I("v_lshlrev_b32 v10, 4, v10")
    I("v_bfe_u32 v11, v0, 3, 2")
    I("v_lshl_add_u32 v11, v11, 5, v10")
    I("v_and_b32 v3, 7, v0")
    I("v_lshl_add_u32 v11, v3, 1, v11")
    poll("L_hpoll",
         ["buffer_load_dwordx4 v[%d:%d], v14, s[36:39], s52 offen offset:%d sc1" % (AD + 4 * ds, AD + 4 * ds + 3, 256 * ds) for ds in range(2)],
         range(AD, AD + 8), AMASK)
    stamp(9)
    DG = 32
    S = 92
    for ds in range(2):
        I("v_mfma_f32_16x16x32_bf16 v[%d:%d], v[%d:%d], v[%d:%d], %s" % (S, S + 3, AD + 4 * ds, AD + 4 * ds + 3, AD + 4 * ds, AD + 4 * ds + 3, "0" if ds == 0 else "v[%d:%d]" % (S, S + 3)))
        for mat in range(2):
            for c in range(4):
                d = DG + 4 * (mat * 4 + c)
                bb = W + 16 * (ds * 2 + mat) + 4 * c
                I("v_mfma_f32_16x16x32_bf16 v[%d:%d], v[%d:%d], v[%d:%d], %s" % (d, d + 3, AD + 4 * ds, AD + 4 * ds + 3, bb, bb + 3, "0" if ds == 0 else "v[%d:%d]" % (d, d + 3)))
    I("s_mov_b64 s[72:73], 2"); I("s_mov_b64 s[74:75], 4"); I("s_mov_b64 s[76:77], 8")
    I("v_cndmask_b32 v76, v%d, v%d, s[72:73]" % (S, S + 1))
    I("v_cndmask_b32 v76, v76, v%d, s[74:75]" % (S + 2))
    I("v_cndmask_b32 v76, v76, v%d, s[76:77]" % (S + 3))
    for t in range(8):
        d = DG + 4 * t
        I("v_add_f32_dpp v%d, v%d, v%d row_ror:8 row_mask:0xf bank_mask:0x3" % (80 + t, d + 2, d + 0))
        I("v_add_f32_dpp v%d, v%d, v%d row_ror:8 row_mask:0xf bank_mask:0xc" % (80 + t, d + 1, d + 3))
    I("s_mov_b64 exec, 0x000f000f")
    I("ds_write_b32 v7, v76 offset:%d" % L_STAT)
    I("s_mov_b64 exec, 0xffff")
    I("ds_write_b128 v8, v[80:83] offset:%d" % L_GUD)
    I("ds_write_b128 v8, v[84:87] offset:%d" % (L_GUD + 256))
    I("s_mov_b64 exec, -1")
    I("s_waitcnt lgkmcnt(0)")
    I("s_barrier")
    stamp(10)
    I("s_cmp_lg_u32 s34, 0")
    I("s_cbranch_scc1 L_hend")
    for w in range(4):
        I("ds_read_b128 v[%d:%d], v10 offset:%d" % (48 + 4 * w, 51 + 4 * w, L_STAT + 32 * w))
    for w in range(4):
        I("ds_read2st64_b32 v[%d:%d], v9 offset0:%d offset1:%d" % (32 + 2 * w, 33 + 2 * w, 2 * w, 2 * w + 1))
    I("s_lshl_b32 s52, s66, 7")
    I("s_add_u32 s52, s52, %d" % HHBUF)
    I("s_waitcnt lgkmcnt(4)")
    for w in range(4):
        I("v_add_f32 v%d, v%d, v%d" % (48 + 4 * w, 48 + 4 * w, 49 + 4 * w))
        I("v_add_f32 v%d, v%d, v%d" % (50 + 4 * w, 50 + 4 * w, 51 + 4 * w))
    I("v_add_f32 v48, v48, v52"); I("v_add_f32 v50, v50, v54")
    I("v_add_f32 v56, v56, v60"); I("v_add_f32 v58, v58, v62")
    I("v_add_f32 v48, v48, v56"); I("v_add_f32 v50, v50, v58")
    I("v_mul_f32 v50, 0x3b000000, v50")
    I("v_mul_f32 v48, 0x3b000000, v48")
    I("v_fma_f32 v48, -v50, v50, v48")
    I("v_max_f32 v48, 0, v48")
    rnd(48, 48)
    I("v_add_f32 v48, 0x3727c5ac, v48")
    rnd(48, 48)
    I("v_sqrt_f32 v48, v48")
    rnd(48, 48)
    I("v_rcp_f32 v48, v48")
    rnd(50, 50)
    I("s_waitcnt lgkmcnt(0)")
    for t in range(2):
        I("v_add_f32 v%d, v%d, v%d" % (32 + t, 32 + t, 34 + t))
        I("v_add_f32 v%d, v%d, v%d" % (36 + t, 36 + t, 38 + t))
    for t in range(2):
        I("v_add_f32 v%d, v%d, v%d" % (32 + t, 32 + t, 36 + t))
    for t in range(2):
        I("v_fma_f32 v%d, -v50, v%d, v%d" % (32 + t, CSUM + t, 32 + t))
    for t in range(2):
        I("v_mul_f32 v%d, v%d, v48" % (32 + t, 32 + t))
    I("v_cvt_pk_bf16_f32 v36, v32, v33")
    I("v_lshlrev_b32 v32, 16, v36")
    I("v_and_b32 v33, 0xffff0000, v36")
    I("v_max_f32 v32, 0, v32")
    I("v_mul_f32 v32, v32, v33")
    I("v_mov_b32_dpp v33, v32 quad_perm:[1,0,3,2] row_mask:0xf bank_mask:0xf")
    I("v_cvt_pk_bf16_f32 v36, v32, v33")
    I("s_mov_b32 s63, 0x%x" % SENT_CLAMP)
    I("v_min_u32 v36, s63, v36")
    I("s_mov_b32 s70, 0x55555555"); I("s_mov_b32 s71, 0x55555555")
    I("s_mov_b64 exec, s[70:71]")
    I("buffer_store_dword v36, v11, s[36:39], s52 offen sc1")
    I("s_mov_b64 exec, -1")
    I("s_branch L_hend")

    k.label("L_down")
    I("v_lshrrev_b32 v5, 2, v0")
    I("v_lshlrev_b32 v5, 12, v5")
    I("v_bfe_u32 v6, v0, 1, 1")
    I("v_lshl_add_u32 v5, v6, 8, v5")
    I("v_and_b32 v7, 1, v0")
    I("v_lshl_add_u32 v5, v7, 4, v5")
    I("s_lshr_b32 s52, s68, 1")
    I("s_lshl_b32 s52, s52, 9")
    I("s_and_b32 s53, s68, 1")
    I("s_lshl_b32 s53, s53, 7")
    I("s_add_u32 s52, s52, s53")
    I("s_lshl_b32 s53, s34, 5")
    I("s_add_u32 s52, s52, s53")
    I("s_add_u32 s52, s52, %d" % YREC)
    I("s_add_u32 s56, s52, 65536")
    I("v_lshlrev_b32 v9, 4, v6")
    I("v_lshl_add_u32 v9, v7, 3, v9")
    I("v_lshrrev_b32 v10, 5, v0")
    I("v_lshl_add_u32 v9, v10, 2, v9")
    I("v_lshlrev_b32 v11, 6, v6")
    I("v_lshl_add_u32 v11, v7, 3, v11")
    I("v_lshl_add_u32 v11, v10, 2, v11")
    I("s_lshl_b32 s53, s34, 4")
    I("v_add_u32 v11, s53, v11")
    Y = 16
    poll("L_ypoll",
         ["buffer_load_dwordx4 v[%d:%d], v5, s[36:39], s%d offen sc1" % (Y + 4 * t, Y + 4 * t + 3, 52 if t == 0 else 56) for t in range(2)],
         range(Y, Y + 8), None)
    for t in range(4):
        I("v_add_f32 v%d, v%d, v%d" % (Y + t, Y + t, Y + 4 + t))
    I("v_permlane32_swap_b32 v%d, v%d" % (Y + 0, Y + 2))
    I("v_permlane32_swap_b32 v%d, v%d" % (Y + 1, Y + 3))
    I("v_add_f32 v%d, v%d, v%d" % (Y + 0, Y + 0, Y + 2))
    I("v_add_f32 v%d, v%d, v%d" % (Y + 1, Y + 1, Y + 3))
    I("v_permlane16_swap_b32 v%d, v%d" % (Y + 0, Y + 1))
    I("v_add_f32 v%d, v%d, v%d" % (Y + 0, Y + 0, Y + 1))
    I("v_add_f32_dpp v20, v%d, v%d row_ror:4 row_mask:0xf bank_mask:0xf" % (Y + 0, Y + 0))
    I("v_add_f32_dpp v21, v20, v20 row_ror:8 row_mask:0xf bank_mask:0xf")
    rnd(21, 21)
    I("v_add_f32 v21, v21, v15")
    I("v_mov_b32 v20, v21")
    I("v_permlane16_swap_b32 v20, v21")
    I("v_cvt_pk_bf16_f32 v22, v20, v21")
    I("s_mov_b32 s63, 0x%x" % SENT_CLAMP)
    I("v_min_u32 v22, s63, v22")
    I("s_lshl_b32 s52, s68, 2")
    I("s_add_u32 s52, s52, s34")
    I("s_lshl_b32 s52, s52, 5")
    I("s_add_u32 s52, s52, %d" % HBUF)
    I("s_mov_b32 s70, 0xf"); I("s_mov_b32 s71, 0xf")
    I("s_mov_b64 exec, s[70:71]")
    I("buffer_store_dword v22, v9, s[36:39], s52 offen sc1")
    I("ds_write_b32 v11, v22 offset:%d" % L_HB)
    I("s_mov_b64 exec, -1")
    stamp(17)
    AD = 64
    a_addr(14)
    I("s_mov_b32 s70, 0x000f000f"); I("s_mov_b32 s71, 0x000f000f")
    I("s_add_u32 s40, s26, %d" % HHBUF)
    I("s_addc_u32 s41, s27, 0")
    I("s_mov_b32 s42, 5504")
    I("s_mov_b32 s43, 0x20000")
    for t in range(24): I("v_mov_b32 v%d, 0" % (AD + t))
    for i in range(6):
        I("s_add_u32 s%d, s34, %d" % (56 + i, 4 * i))
        I("s_lshl_b32 s%d, s%d, 8" % (56 + i, 56 + i))
    I("v_lshlrev_b32 v8, 4, v%d" % n)
    I("s_lshl_b32 s53, s34, 8")
    I("v_add_u32 v8, s53, v8")
    I("v_lshlrev_b32 v9, 2, v0")
    I("v_add_u32 v9, %d, v9" % L_DP)
    I("v_lshlrev_b32 v10, 1, v0")
    I("v_lshrrev_b32 v11, 5, v0")
    I("v_lshlrev_b32 v11, 10, v11")
    I("v_and_b32 v3, 31, v0")
    I("v_lshl_add_u32 v11, v3, 1, v11")
    I("s_mov_b32 s44, s22"); I("s_mov_b32 s45, s23"); I("s_mov_b32 s46, 2048"); I("s_mov_b32 s47, 0x20000")
    poll("L_hhpoll",
         ["buffer_load_dwordx4 v[%d:%d], v14, s[40:43], s%d offen sc1" % (AD + 4 * i, AD + 4 * i + 3, 56 + i) for i in range(6)],
         range(AD, AD + 24), AMASK)
    stamp(9)
    for i in range(6):
        for c in range(4):
            d = 32 + 4 * c
            bb = W + 16 * i + 4 * c
            I("v_mfma_f32_16x16x32_bf16 v[%d:%d], v[%d:%d], v[%d:%d], %s" % (d, d + 3, AD + 4 * i, AD + 4 * i + 3, bb, bb + 3, "0" if i == 0 else "v[%d:%d]" % (d, d + 3)))
    for c in range(4):
        d = 32 + 4 * c
        I("v_add_f32_dpp v%d, v%d, v%d row_ror:8 row_mask:0xf bank_mask:0x3" % (48 + c, d + 2, d + 0))
        I("v_add_f32_dpp v%d, v%d, v%d row_ror:8 row_mask:0xf bank_mask:0xc" % (48 + c, d + 1, d + 3))
    I("s_mov_b64 exec, 0xffff")
    I("ds_write_b128 v8, v[48:51] offset:%d" % L_DP)
    I("s_mov_b64 exec, -1")
    I("s_waitcnt lgkmcnt(0)")
    I("s_barrier")
    stamp(10)
    I("s_cmp_lg_u32 s34, 0")
    I("s_cbranch_scc1 L_hend")
    for w in range(2):
        I("ds_read2st64_b32 v[%d:%d], v9 offset0:%d offset1:%d" % (32 + 2 * w, 33 + 2 * w, 2 * w, 2 * w + 1))
    I("ds_read_u16 v40, v10 offset:%d" % L_HB)
    I("s_lshl_b32 s52, s68, 6")
    I("s_waitcnt lgkmcnt(0)")
    I("v_add_f32 v32, v32, v33")
    I("v_add_f32 v34, v34, v35")
    I("v_add_f32 v32, v32, v34")
    rnd(32, 32)
    I("v_lshlrev_b32 v35, 16, v40")
    I("v_add_f32 v32, v32, v35")
    I("v_mov_b32_dpp v33, v32 quad_perm:[1,0,3,2] row_mask:0xf bank_mask:0xf")
    I("v_cvt_pk_bf16_f32 v34, v32, v33")
    I("s_mov_b32 s70, 0x55555555"); I("s_mov_b32 s71, 0x55555555")
    I("s_mov_b64 exec, s[70:71]")
    I("buffer_store_dword v34, v11, s[44:47], s52 offen")
    I("s_cmp_lg_u32 s68, 0")
    I("s_cbranch_scc1 L_noepoch")
    I("v_mov_b32 v35, s35")
    I("s_mov_b64 exec, 1")
    I("buffer_store_dword v35, off, s[36:39], 0 offset:%d sc1" % EPOCH)
    k.label("L_noepoch")
    I("s_mov_b64 exec, -1")
    k.label("L_hend")
    stamp(11)
    stamp_flush()
    k.label("L_end")
    I("s_endpgm")

    body = k.finish()
    for p in k.problems: print("HAZARD-EDGE:", p)
    nv = 256
    out = [HEADER.rstrip()]
    out.append("; Override launch geometry by editing the next line (default: block=256,")
    out.append("; @launch grid=(256,1,1) block=(512,1,1) lds=%d" % LDS_BYTES)
    out.append('.amdgcn_target "amdgcn-amd-amdhsa--gfx950"')
    out.append(".text")
    out.append(".globl %s" % KNAME)
    out.append(".p2align 8")
    out.append(".type %s,@function" % KNAME)
    out.append("%s:" % KNAME)
    for ln in body:
        out.append(ln if ln.endswith(":") else "    " + ln)
    out.append('.section .rodata,"a"')
    out.append(".p2align 6")
    out.append(".amdhsa_kernel %s" % KNAME)
    out.append("  .amdhsa_next_free_vgpr %d" % nv)
    out.append("  .amdhsa_next_free_sgpr 102")
    out.append("  .amdhsa_accum_offset %d" % nv)
    out.append("  .amdhsa_group_segment_fixed_size 0")
    out.append("  .amdhsa_kernarg_size 96")
    out.append("  .amdhsa_user_sgpr_count 2")
    out.append("  .amdhsa_user_sgpr_kernarg_segment_ptr 1")
    out.append("  .amdhsa_system_sgpr_workgroup_id_x 1")
    out.append(".end_amdhsa_kernel")
    open(path, "w").write("\n".join(out) + "\n")

if __name__ == "__main__":
    import argparse
    ap = argparse.ArgumentParser()
    ap.add_argument("out")
    ap.add_argument("--stamps", action="store_true")
    ap.add_argument("--NS", type=int, default=26)
    ap.add_argument("--NPARK", type=int, default=4)
    ap.add_argument("--nopref", action="store_true")
    ap.add_argument("--nocomp", action="store_true")
    ap.add_argument("--prio", type=int, default=0)
    ap.add_argument("--CAP", type=int, default=8)
    ap.add_argument("--b0", action="store_true")
    a = ap.parse_args()
    gen(a.out, NS=a.NS, CAP=a.CAP, stamps=a.stamps, b0=a.b0, NPARK=a.NPARK, nopref=a.nopref, nocomp=a.nocomp, prio=a.prio)
```

```python
import sys
from asmlib import K

KNAME = "sequential_preLN__gqa_block_cached__glu_gated_reglu__decode_kernel"
REF = "sequential_preLN__gqa_block_cached__glu_gated_reglu__decode.s.ref"
HEADER = open(REF).read().split("; Override")[0]

EPOCH = 0
CNT = 0x1000
QG = 0x10000
OREC = 0x100000
YREC = 0x140000
HBUF = 0x160000
HHBUF = 0x161000
DBG = 0x200000
WSREC = 0x300000
L_Q = 0x000
L_FLAG = 0x100
L_GO = 0x104
L_MLP = 0x120
L_PART = 0x200
L_YP = 0xA00
L_GUD = 0x1200
L_STAT = 0x1A00
L_CS = 0x1B00
L_DP = 0x1200
L_HB = 0x1F00
LDS_BYTES = 0x2000

SENT_CLAMP = 0xFFFFFFFE
SPIN = 1 << 14

def gen(path, contig=False, NS=26, CAP=34, stamps=False, NPARK=2, XP=(2, 6, 10, 14), b0=False, nopref=False, nocomp=False, prio=0, prio2=0, xf=None, wqcap=32, XG=6, warm=False, warmnt=False, SL0=22, SL1=22, NPOLL=3):
    NFILL = NPARK + 2
    XF = (NS - NFILL - 4) & ~1
    if xf is not None: XF = xf
    assert XF > max(XP[:NPARK])
    k = K()
    I = k.I
    vST = 250
    nst = [0]
    def stamp(idx):
        if not stamps: return
        I("s_memrealtime s[98:99]")
        I("s_waitcnt lgkmcnt(0)")
        I("v_writelane_b32 v%d, s98, %d" % (vST, idx))
    apend = []
    def astamp(idx):
        if not stamps: return
        r = 78 + 2 * len(apend)
        assert r <= 96
        I("s_memrealtime s[%d:%d]" % (r, r + 1))
        apend.append((idx, r))
    def acollect(keep=0):
        if not stamps: return
        I("s_waitcnt lgkmcnt(0)")
        for idx, r in apend: I("v_writelane_b32 v%d, s%d, %d" % (vST, r, idx))
        del apend[keep:]
    def stamp_flush():
        if not stamps: return
        I("s_mov_b64 exec, -1")
        I("s_getreg_b32 s98, hwreg(HW_REG_XCC_ID)")
        I("v_writelane_b32 v%d, s98, 63" % vST)
        I("s_lshl_b32 s98, s2, 3")
        I("s_add_u32 s98, s98, s28")
        I("s_lshl_b32 s98, s98, 8")
        I("s_add_u32 s98, s98, %d" % DBG)
        I("v_lshlrev_b32 v%d, 2, v0" % (vST + 1))
        I("buffer_store_dword v%d, v%d, s[36:39], s98 offen" % (vST, vST + 1))

    def rnd(dst, src):
        I("v_cvt_pk_bf16_f32 v%d, v%d, v%d" % (dst, src, src))
        I("v_and_b32 v%d, 0xffff0000, v%d" % (dst, dst))

    def swap_reduce(op, v, t):
        I("v_mov_b32 v%d, v%d" % (t, v))
        I("v_permlane16_swap_b32 v%d, v%d" % (t, v))
        I("%s v%d, v%d, v%d" % (op, v, v, t))
        I("v_mov_b32 v%d, v%d" % (t, v))
        I("v_permlane32_swap_b32 v%d, v%d" % (t, v))
        I("%s v%d, v%d, v%d" % (op, v, v, t))

    I("s_cmp_ge_u32 s2, 256")
    I("s_cbranch_scc1 L_end")
    I("s_load_dwordx16 s[4:19], s[0:1], 0")
    I("s_load_dwordx8 s[20:27], s[0:1], 64")
    I("v_lshrrev_b32 v1, 6, v0")
    I("v_and_b32 v0, 63, v0")
    I("v_readfirstlane_b32 s28, v1")
    I("s_lshr_b32 s29, s2, 3")
    I("s_and_b32 s30, s2, 7")
    I("s_bfe_u32 s31, s2, 0x10001")
    I("s_bfe_u32 s32, s2, 0x10002")
    I("s_lshl_b32 s32, s32, 1")
    I("s_and_b32 s33, s2, 1")
    I("s_or_b32 s32, s32, s33")
    I("s_lshl_b32 s33, s31, 5")
    I("s_add_u32 s33, s33, s29")
    I("s_mov_b32 s66, s33")
    I("s_sub_u32 s68, s33, 44")
    I("s_cmp_lt_u32 s33, 43")
    I("s_cselect_b32 s67, 1, 0")
    I("s_cmp_lt_u32 s68, 16")
    I("s_cselect_b32 s67, 2, s67")
    I("s_bfe_u32 s69, s29, 0x20001")
    I("s_cmp_lg_u32 s69, s32")
    I("s_cselect_b32 s67, 0, s67")
    if stamps:
        I("v_mov_b32 v%d, 0" % vST)
        I("s_memrealtime s[78:79]")
    I("s_waitcnt lgkmcnt(0)")
    if stamps:
        I("v_writelane_b32 v%d, s78, 0" % vST)
        astamp(12)
    I("s_mov_b32 s36, s26")
    I("s_mov_b32 s37, s27")
    I("s_mov_b32 s38, %d" % WSREC)
    I("s_mov_b32 s39, 0x20000")
    I("s_cmp_ge_u32 s28, 4")
    I("s_cbranch_scc1 L_helper")

    vOff = 1; vQ = 2; vAcc = 6; vM = 14; vL = 15
    a = [16, 17, 18, 19]; u0 = 20; u1 = 21; vw = 22; vt = 23; vsc = 24; vmx = 25; vmn = 26; vp = 27; val = 28
    vplo = 29; vphi = 30; vT = [31, 32]; vCA = 33
    SA, SB = 36, 68
    PK = [100 + 32 * i for i in range(NPARK)]
    P0 = 100
    RD = 2
    I("v_lshlrev_b32 v%d, 4, v0" % vOff)
    I("s_lshl_b32 s52, s33, 21")
    I("s_add_u32 s40, s6, s52")
    I("s_addc_u32 s41, s7, 0")
    I("s_mov_b32 s42, 0x200000")
    I("s_mov_b32 s43, 0x20000")
    I("s_add_u32 s44, s8, s52")
    I("s_addc_u32 s45, s9, 0")
    I("s_mov_b32 s46, 0x200000")
    I("s_mov_b32 s47, 0x20000")
    I("s_mov_b32 s48, s26")
    I("s_mov_b32 s49, s27")
    I("s_mov_b32 s50, 0")
    I("s_mov_b32 s51, 0x20000")
    if contig:
        I("s_mul_i32 s60, s32, %d" % (4 * NS))
    else:
        I("s_lshl_b32 s60, s32, 2")
    I("s_add_u32 s60, s60, s28")
    USH = 2 if contig else 4
    I("s_lshl_b32 s61, s33, 8")
    I("s_add_u32 s61, s61, %d" % CNT)
    I("v_mov_b32 v%d, s61" % vCA)
    if b0: I("s_barrier")
    outstanding = [0]
    def paced():
        if outstanding[0] >= CAP:
            I("s_waitcnt vmcnt(%d)" % (CAP - 1))
            outstanding[0] = CAP - 1
        outstanding[0] += 1
    def ld(base, kv, j, soff="s52"):
        r = base + 16 * kv + 4 * j
        I("buffer_load_dwordx4 v[%d:%d], v%d, %s, %s offen offset:%d nt" % (r, r + 3, vOff, "s[40:43]" if kv == 0 else "s[44:47]", soff, 1024 * j))
    def issue_atomic(slot):
        I("s_cmp_lt_u32 s54, %d" % NS)
        I("s_cselect_b32 s50, 0, %d" % WSREC)
        I("v_mov_b32 v%d, 1" % vT[slot])
        I("s_mov_b64 exec, 1")
        I("buffer_atomic_add v%d, v%d, s[48:51], 0 offen sc0 sc1" % (vT[slot], vCA))
        I("s_mov_b64 exec, -1")
        I("s_add_u32 s54, s54, 1")
    for ci, base in enumerate(PK + [SA, SB]):
        I("s_add_u32 s52, s60, %d" % (ci << USH))
        I("s_lshl_b32 s52, s52, 12")
        if ci == NPARK: I("s_mov_b32 s54, %d" % NFILL)
        if ci >= NPARK:
            paced(); issue_atomic(ci - NPARK)
        for kv in range(2):
            for j in range(4):
                paced(); ld(base, kv, j)
        if ci < 6: astamp(27 + ci)
    I("s_mov_b32 s53, %d" % NFILL)
    I("s_mov_b32 s55, 1")
    I("s_mov_b32 s56, 1")
    I("s_mov_b32 s57, 0")
    for i in range(8): I("v_mov_b32 v%d, 0" % (vAcc + i))
    I("v_mov_b32 v%d, 0xf149f2ca" % vM)
    I("v_mov_b32 v%d, 0" % vL)
    acollect(keep=1)
    stamp(1)
    I("s_barrier")
    I("v_and_b32 v%d, 15, v0" % vt)
    I("v_lshlrev_b32 v%d, 4, v%d" % (vt, vt))
    I("ds_read_b128 v[%d:%d], v%d offset:%d" % (vQ, vQ + 3, vt, L_Q))
    I("s_waitcnt lgkmcnt(0)")
    stamp(2)

    def consume(base, wait=None, reload=None):
        if nocomp:
            for kv in range(2):
                for j in range(4):
                    if wait: wait(kv, j)
                    r = base + 16 * kv + 4 * j
                    I("v_xor_b32 v%d, v%d, v%d" % (vAcc + j, r, vAcc + j))
                    if reload: reload(kv, j)
            return
        for j in range(4):
            if wait: wait(0, j)
            r = base + 4 * j
            I("v_dot2_f32_bf16 v%d, v%d, v%d, 0" % (a[j], r, vQ))
            for t in range(1, 4):
                I("v_dot2_f32_bf16 v%d, v%d, v%d, v%d" % (a[j], r + t, vQ + t, a[j]))
            if reload: reload(0, j)
        I("v_add_f32_dpp v%d, v%d, v%d row_ror:8 row_mask:0xf bank_mask:0x3" % (u0, a[0], a[0]))
        I("v_add_f32_dpp v%d, v%d, v%d row_ror:8 row_mask:0xf bank_mask:0xc" % (u0, a[2], a[2]))
        I("v_add_f32_dpp v%d, v%d, v%d row_ror:8 row_mask:0xf bank_mask:0x3" % (u1, a[1], a[1]))
        I("v_add_f32_dpp v%d, v%d, v%d row_ror:8 row_mask:0xf bank_mask:0xc" % (u1, a[3], a[3]))
        I("v_add_f32_dpp v%d, v%d, v%d row_half_mirror row_mask:0xf bank_mask:0x5" % (vw, u0, u0))
        I("v_add_f32_dpp v%d, v%d, v%d row_half_mirror row_mask:0xf bank_mask:0xa" % (vw, u1, u1))
        I("v_add_f32_dpp v%d, v%d, v%d quad_perm:[1,0,3,2] row_mask:0xf bank_mask:0xf" % (vt, vw, vw))
        I("v_add_f32_dpp v%d, v%d, v%d quad_perm:[2,3,0,1] row_mask:0xf bank_mask:0xf" % (vw, vt, vt))
        rnd(vw, vw)
        I("v_mul_f32 v%d, 0x3db504f3, v%d" % (vw, vw))
        rnd(vw, vw)
        I("v_mul_f32 v%d, 0x3fb8aa3b, v%d" % (vsc, vw))
        I("v_max_f32_dpp v%d, v%d, v%d row_ror:4 row_mask:0xf bank_mask:0xf" % (vmx, vsc, vsc))
        I("v_max_f32_dpp v%d, v%d, v%d row_ror:8 row_mask:0xf bank_mask:0xf" % (vmn, vmx, vmx))
        I("v_max_f32 v%d, v%d, v%d" % (vmn, vmn, vM))
        I("v_sub_f32 v%d, v%d, v%d" % (vp, vsc, vmn))
        I("v_sub_f32 v%d, v%d, v%d" % (val, vM, vmn))
        I("v_exp_f32 v%d, v%d" % (vp, vp))
        I("v_exp_f32 v%d, v%d" % (val, val))
        I("v_mov_b32 v%d, v%d" % (vM, vmn))
        I("v_cvt_pk_bf16_f32 v%d, v%d, 0" % (vplo, vp))
        I("v_lshlrev_b32 v%d, 16, v%d" % (vphi, vplo))
        I("v_fma_f32 v%d, v%d, v%d, v%d" % (vL, vL, val, vphi))
        for i in range(8):
            I("v_mul_f32 v%d, v%d, v%d" % (vAcc + i, vAcc + i, val))
        for j in range(4):
            if wait: wait(1, j)
            r = base + 16 + 4 * j
            for t in range(4):
                I("v_dot2c_f32_bf16_dpp v%d, v%d, v%d row_newbcast:%d row_mask:0xf bank_mask:0xf" % (vAcc + 2 * t, vplo, r + t, 4 * j))
                I("v_dot2c_f32_bf16_dpp v%d, v%d, v%d row_newbcast:%d row_mask:0xf bank_mask:0xf" % (vAcc + 2 * t + 1, vphi, r + t, 4 * j))
            if reload: reload(1, j)

    k.label("L_loop")
    for slot, base in enumerate((SA, SB)):
        if slot == 0:
            if stamps:
                I("s_and_b32 s62, s57, 7")
                I("s_cmp_lg_u32 s62, 0")
                I("s_cbranch_scc1 L_nost")
                I("s_memrealtime s[98:99]")
                I("s_lshr_b32 s62, s57, 3")
                I("s_add_u32 m0, s62, 20")
                I("s_waitcnt lgkmcnt(0)")
                I("s_nop 1")
                I("v_writelane_b32 v%d, s98, m0" % vST)
                k.label("L_nost")
            for pi in range(NPARK):
                I("s_cmp_eq_u32 s57, %d" % XP[pi])
                I("s_cbranch_scc1 L_park%d" % pi)
                k.label("L_park%d_ret" % pi)
            I("s_cmp_eq_u32 s57, %d" % XF)
            I("s_cbranch_scc1 L_flag")
            k.label("L_flag_ret")
            I("s_cmp_eq_u32 s57, %d" % XG)
            I("s_cbranch_scc1 L_go")
            k.label("L_go_ret")
        I("s_cmp_eq_u32 s%d, 0" % (55 + slot))
        I("s_cbranch_scc1 L_fin")
        I("s_waitcnt vmcnt(%d)" % (9 * RD - 2))
        I("v_readfirstlane_b32 s52, v%d" % vT[slot])
        I("s_lshl_b32 s62, s53, %d" % USH)
        I("s_add_u32 s62, s62, s60")
        I("s_add_u32 s52, s52, %d" % (NS * 16))
        I("s_cmp_lt_u32 s53, %d" % NS)
        I("s_cselect_b32 s52, s62, s52")
        I("s_add_u32 s53, s53, 1")
        I("s_cmp_lt_u32 s52, 512")
        I("s_cselect_b32 s42, 0x200000, 0")
        I("s_cselect_b32 s46, 0x200000, 0")
        I("s_cselect_b32 s%d, 1, 0" % (55 + slot))
        I("s_lshl_b32 s52, s52, 12")
        issue_atomic(slot)
        def wait(kv, j):
            if not (kv == 0 and j == 0):
                I("s_waitcnt vmcnt(%d)" % (9 * RD - 1))
        consume(base, wait, lambda kv, j, base=base: ld(base, kv, j))
        I("s_add_u32 s57, s57, 1")
    I("s_branch L_loop")
    for pi in range(NPARK):
        k.label("L_park%d" % pi)
        if pi == 1: stamp(25)
        consume(PK[pi])
        if pi == 1: stamp(26)
        I("s_branch L_park%d_ret" % pi)
    k.label("L_go")
    I("v_mov_b32 v%d, %d" % (vt, L_GO))
    I("v_mov_b32 v%d, 1" % vw)
    I("ds_write_b32 v%d, v%d" % (vt, vw))
    I("s_branch L_go_ret")
    k.label("L_flag")
    I("s_mov_b32 s62, %d" % SPIN)
    I("v_mov_b32 v%d, %d" % (vt, L_FLAG))
    k.label("L_flagspin")
    I("ds_read_b32 v%d, v%d" % (vw, vt))
    I("s_waitcnt lgkmcnt(0)")
    I("v_readfirstlane_b32 s63, v%d" % vw)
    I("s_cmp_eq_u32 s63, 1")
    I("s_cbranch_scc1 L_flag_ret")
    I("s_sleep 8")
    I("s_sub_u32 s62, s62, 1")
    I("s_cbranch_scc0 L_flagspin")
    I("s_branch L_flag_ret")

    k.label("L_fin")
    stamp(3)
    I("v_add_f32_dpp v%d, v%d, v%d row_ror:4 row_mask:0xf bank_mask:0xf" % (vt, vL, vL))
    I("v_mov_b32 v%d, v%d" % (vmn, vM))
    I("v_add_f32_dpp v%d, v%d, v%d row_ror:8 row_mask:0xf bank_mask:0xf" % (vL, vt, vt))
    swap_reduce("v_max_f32", vmn, vt)
    I("v_sub_f32 v%d, v%d, v%d" % (val, vM, vmn))
    I("v_exp_f32 v%d, v%d" % (val, val))
    I("v_mul_f32 v%d, v%d, v%d" % (vL, vL, val))
    for i in range(8):
        I("v_mul_f32 v%d, v%d, v%d" % (vAcc + i, vAcc + i, val))
    swap_reduce("v_add_f32", vL, vt)
    for i in range(4):
        I("v_permlane32_swap_b32 v%d, v%d" % (vAcc + i, vAcc + i + 4))
    for i in range(4):
        I("v_add_f32 v%d, v%d, v%d" % (vAcc + i, vAcc + i, vAcc + i + 4))
    I("v_permlane16_swap_b32 v%d, v%d" % (vAcc + 0, vAcc + 2))
    I("v_permlane16_swap_b32 v%d, v%d" % (vAcc + 1, vAcc + 3))
    I("v_add_f32 v%d, v%d, v%d" % (vAcc + 0, vAcc + 0, vAcc + 2))
    I("v_add_f32 v%d, v%d, v%d" % (vAcc + 1, vAcc + 1, vAcc + 3))
    I("v_and_b32 v%d, 15, v0" % vt)
    I("v_lshrrev_b32 v%d, 4, v0" % vw)
    I("v_lshlrev_b32 v%d, 5, v%d" % (vt, vt))
    I("v_lshl_add_u32 v%d, v%d, 3, v%d" % (vt, vw, vt))
    I("s_lshl_b32 s62, s28, 9")
    I("v_add_u32 v%d, s62, v%d" % (vt, vt))
    I("ds_write_b64 v%d, v[%d:%d] offset:%d" % (vt, vAcc, vAcc + 1, L_PART))
    I("v_mov_b32 v%d, v%d" % (vM, vmn))
    I("s_lshl_b32 s62, s28, 3")
    I("v_mov_b32 v%d, s62" % vt)
    I("s_mov_b64 exec, 1")
    I("ds_write_b64 v%d, v[%d:%d] offset:%d" % (vt, vM, vL, L_MLP))
    I("s_mov_b64 exec, -1")
    I("s_waitcnt lgkmcnt(0)")
    I("s_barrier")
    I("s_cmp_lg_u32 s28, 0")
    I("s_cbranch_scc1 L_sdone")
    Z = P0
    I("v_mov_b32 v20, 0")
    I("v_lshlrev_b32 v21, 3, v0")
    I("ds_read_b128 v[%d:%d], v20 offset:%d" % (Z, Z + 3, L_MLP))
    I("ds_read_b128 v[%d:%d], v20 offset:%d" % (Z + 4, Z + 7, L_MLP + 16))
    for w in range(4):
        I("ds_read_b64 v[%d:%d], v21 offset:%d" % (Z + 8 + 2 * w, Z + 9 + 2 * w, L_PART + 512 * w))
    I("s_lshl_b32 s62, s2, 10")
    I("s_add_u32 s62, s62, %d" % OREC)
    I("s_waitcnt lgkmcnt(4)")
    MM = Z + 16; LL = Z + 17; O0 = Z + 18; O1 = Z + 19
    I("v_max_f32 v%d, v%d, v%d" % (MM, Z, Z + 2))
    I("v_max3_f32 v%d, v%d, v%d, v%d" % (MM, MM, Z + 4, Z + 6))
    for w in range(4):
        I("v_sub_f32 v%d, v%d, v%d" % (Z + 2 * w, Z + 2 * w, MM))
    for w in range(4):
        I("v_exp_f32 v%d, v%d" % (Z + 2 * w, Z + 2 * w))
    I("v_mul_f32 v%d, v%d, v%d" % (LL, Z, Z + 1))
    for w in range(1, 4):
        I("v_fmac_f32 v%d, v%d, v%d" % (LL, Z + 2 * w, Z + 2 * w + 1))
    I("s_waitcnt lgkmcnt(0)")
    I("v_mul_f32 v%d, v%d, v%d" % (O0, Z, Z + 8))
    I("v_mul_f32 v%d, v%d, v%d" % (O1, Z, Z + 9))
    for w in range(1, 4):
        I("v_fmac_f32 v%d, v%d, v%d" % (O0, Z + 2 * w, Z + 8 + 2 * w))
        I("v_fmac_f32 v%d, v%d, v%d" % (O1, Z + 2 * w, Z + 9 + 2 * w))
    I("s_mov_b32 s63, 0x%x" % SENT_CLAMP)
    for r in (MM, LL, O0, O1):
        I("v_min_u32 v%d, s63, v%d" % (r, r))
    I("buffer_store_dwordx2 v[%d:%d], v21, s[36:39], s62 offen sc1" % (O0, O1))
    I("s_mov_b64 exec, 1")
    I("buffer_store_dwordx2 v[%d:%d], v20, s[36:39], s62 offen offset:512 sc1" % (MM, LL))
    I("s_mov_b64 exec, -1")
    stamp(4)
    k.label("L_sdone")
    stamp_flush()
    I("s_endpgm")

    k.label("L_helper")
    if prio: I("s_setprio %d" % prio)
    I("s_sub_u32 s34, s28, 4")
    g = 1; n = 2
    I("v_lshrrev_b32 v%d, 4, v0" % g)
    I("v_and_b32 v%d, 15, v0" % n)
    I("s_mov_b32 s44, s10"); I("s_mov_b32 s45, s11"); I("s_mov_b32 s46, 0x400000"); I("s_mov_b32 s47, 0x20000")
    I("s_mov_b32 s40, s4"); I("s_mov_b32 s41, s5"); I("s_mov_b32 s42, 2048"); I("s_mov_b32 s43, 0x20000")
    I("v_lshrrev_b32 v3, 3, v%d" % n)
    I("v_lshlrev_b32 v4, 2, v3")
    I("v_add_u32 v4, v4, v%d" % g)
    I("v_lshlrev_b32 v5, 16, v4")
    I("v_and_b32 v6, 7, v%d" % n)
    I("v_lshl_add_u32 v5, v6, 3, v5")
    I("s_lshl_b32 s52, s30, 19")
    I("s_lshl_b32 s53, s29, 8")
    I("s_add_u32 s52, s52, s53")
    I("s_lshl_b32 s53, s34, 6")
    I("s_add_u32 s52, s52, s53")
    R = 16
    for j in range(8):
        I("buffer_load_dwordx2 v[%d:%d], v5, s[44:47], s52 offen" % (R + 2 * j, R + 2 * j + 1))
        if j < 7: I("s_add_u32 s52, s52, 8192")
    astamp(15)
    XFULL = 48
    I("v_and_b32 v7, 1, v0")
    I("v_lshlrev_b32 v7, 10, v7")
    I("v_lshrrev_b32 v8, 1, v0")
    I("v_lshl_add_u32 v8, v8, 5, v7")
    I("buffer_load_dwordx4 v[%d:%d], v8, s[40:43], 0 offen" % (XFULL, XFULL + 3))
    I("buffer_load_dwordx4 v[%d:%d], v8, s[40:43], 0 offen offset:16" % (XFULL + 4, XFULL + 7))
    XA = 56
    I("v_bfe_u32 v9, v%d, 1, 1" % n)
    I("v_lshlrev_b32 v9, 2, v9")
    I("v_add_u32 v9, v9, v%d" % g)
    I("v_lshl_add_u32 v9, v9, 4, v7")
    I("s_lshl_b32 s53, s30, 7")
    I("buffer_load_dwordx4 v[%d:%d], v9, s[40:43], s53 offen" % (XA, XA + 3))
    I("s_load_dword s35, s[26:27], %d" % EPOCH)
    if b0: I("s_barrier")
    I("v_mov_b32 v14, 0")
    I("v_mov_b32 v15, 0")
    I("v_mov_b32 v12, %d" % L_FLAG)
    I("ds_write_b64 v12, v[14:15]")
    I("s_mov_b32 s64, 0x05040100")
    I("s_mov_b32 s65, 0x07060302")
    astamp(1)
    F = 64
    I("s_waitcnt vmcnt(1)")
    astamp(14)
    for t in range(8):
        I("v_lshlrev_b32 v%d, 16, v%d" % (F + 2 * t, XFULL + t))
        I("v_and_b32 v%d, 0xffff0000, v%d" % (F + 2 * t + 1, XFULL + t))
    def lane_par_reduce(v, t):
        I("v_add_f32_dpp v%d, v%d, v%d row_ror:2 row_mask:0xf bank_mask:0xf" % (t, v, v))
        I("v_add_f32_dpp v%d, v%d, v%d row_ror:4 row_mask:0xf bank_mask:0xf" % (v, t, t))
        I("v_add_f32_dpp v%d, v%d, v%d row_ror:8 row_mask:0xf bank_mask:0xf" % (t, v, v))
        I("v_mov_b32 v%d, v%d" % (v, t))
        swap_reduce("v_add_f32", v, t)
    I("v_add_f32 v12, v%d, v%d" % (F, F + 1))
    I("v_add_f32 v13, v%d, v%d" % (F + 2, F + 3))
    for t in range(4, 16, 2):
        I("v_add_f32 v12, v12, v%d" % (F + t))
        I("v_add_f32 v13, v13, v%d" % (F + t + 1))
    I("v_add_f32 v12, v12, v13")
    lane_par_reduce(12, 13)
    I("v_mul_f32 v12, 0x3b000000, v12")
    I("v_mov_b32 v14, 0")
    I("v_mov_b32 v15, 0")
    for t in range(16):
        I("v_sub_f32 v%d, v%d, v12" % (F + t, F + t))
    for t in range(0, 16, 2):
        I("v_fmac_f32 v14, v%d, v%d" % (F + t, F + t))
        I("v_fmac_f32 v15, v%d, v%d" % (F + t + 1, F + t + 1))
    I("v_add_f32 v14, v14, v15")
    lane_par_reduce(14, 13)
    I("v_mul_f32 v14, 0x3b000000, v14")
    rnd(14, 14)
    I("v_add_f32 v14, 0x3727c5ac, v14")
    rnd(14, 14)
    I("v_sqrt_f32 v14, v14")
    rnd(14, 14)
    I("v_rcp_f32 v14, v14")
    rnd(12, 12)
    A = 60
    I("s_waitcnt vmcnt(0)")
    for t in range(4):
        I("v_lshlrev_b32 v%d, 16, v%d" % (F + 0, XA + t))
        I("v_and_b32 v%d, 0xffff0000, v%d" % (F + 1, XA + t))
        I("v_sub_f32 v%d, v%d, v12" % (F + 0, F + 0))
        I("v_sub_f32 v%d, v%d, v12" % (F + 1, F + 1))
        I("v_cvt_pk_bf16_f32 v%d, v%d, v%d" % (F + 2, F + 0, F + 1))
        I("v_lshlrev_b32 v%d, 16, v%d" % (F + 0, F + 2))
        I("v_and_b32 v%d, 0xffff0000, v%d" % (F + 1, F + 2))
        I("v_mul_f32 v%d, v%d, v14" % (F + 0, F + 0))
        I("v_mul_f32 v%d, v%d, v14" % (F + 1, F + 1))
        I("v_cvt_pk_bf16_f32 v%d, v%d, v%d" % (A + t, F + 0, F + 1))
    Bc = 32
    def perm4(src, dst):
        for c in range(4):
            for jj in range(4):
                I("v_perm_b32 v%d, v%d, v%d, s%d" % (dst + 4 * c + jj, src + 2 * (2 * jj + 1) + (c >> 1), src + 2 * (2 * jj) + (c >> 1), 64 + (c & 1)))
    astamp(16)
    perm4(R, Bc)
    D = 80
    for c in range(4):
        I("v_mfma_f32_16x16x32_bf16 v[%d:%d], v[%d:%d], v[%d:%d], 0" % (D + 4 * c, D + 4 * c + 3, A, A + 3, Bc + 4 * c, Bc + 4 * c + 3))
    I("s_waitcnt lgkmcnt(0)")
    I("s_mul_i32 s35, s35, 0x9E3779B1")
    I("s_add_u32 s35, s35, 0x7F4A7C15")
    G = 96
    for c in range(4):
        I("v_mov_b32 v%d, s35" % (G + 2 * c + 1))
    for c in range(4):
        d = D + 4 * c
        I("v_add_f32_dpp v%d, v%d, v%d row_ror:8 row_mask:0xf bank_mask:0x3" % (G + 2 * c, d + 2, d + 0))
        I("v_add_f32_dpp v%d, v%d, v%d row_ror:8 row_mask:0xf bank_mask:0xc" % (G + 2 * c, d + 1, d + 3))
    I("v_lshlrev_b32 v3, 13, v3")
    I("v_lshl_add_u32 v3, v6, 5, v3")
    I("s_lshl_b32 s52, s29, 4")
    I("s_add_u32 s53, s52, s30")
    I("s_lshl_b32 s53, s53, 10")
    I("s_lshl_b32 s54, s34, 8")
    I("s_add_u32 s53, s53, s54")
    I("s_add_u32 s53, s53, %d" % QG)
    I("s_mov_b64 exec, 0xffff")
    I("buffer_store_dwordx4 v[%d:%d], v3, s[36:39], s53 offen sc1" % (G, G + 3))
    I("buffer_store_dwordx4 v[%d:%d], v3, s[36:39], s53 offen offset:16 sc1" % (G + 4, G + 7))
    I("s_mov_b64 exec, -1")
    astamp(2)
    I("v_lshrrev_b32 v3, 3, v0")
    I("v_lshlrev_b32 v3, 10, v3")
    I("v_and_b32 v4, 7, v0")
    I("v_lshl_add_u32 v3, v4, 5, v3")
    I("s_lshl_b32 s53, s31, 3")
    I("s_add_u32 s53, s53, s52")
    I("s_lshl_b32 s53, s53, 10")
    I("s_add_u32 s53, s53, s54")
    I("s_add_u32 s53, s53, %d" % QG)
    Q2 = 104
    I("s_cmp_lg_u32 s34, 0")
    I("s_cbranch_scc1 L_noinit")
    I("v_lshlrev_b32 v8, 4, v0")
    I("v_mov_b32 v16, -1"); I("v_mov_b32 v17, -1"); I("v_mov_b32 v18, -1"); I("v_mov_b32 v19, -1")
    I("s_lshl_b32 s56, s2, 10")
    I("s_add_u32 s56, s56, %d" % OREC)
    I("buffer_store_dwordx4 v[16:19], v8, s[36:39], s56 offen sc1")
    I("v_lshlrev_b32 v9, 3, v0")
    I("s_lshl_b32 s56, s2, 9")
    I("s_add_u32 s56, s56, %d" % YREC)
    I("buffer_store_dwordx2 v[16:17], v9, s[36:39], s56 offen sc1")
    I("v_lshlrev_b32 v9, 2, v0")
    I("s_lshl_b32 s56, s66, 7")
    I("s_add_u32 s56, s56, %d" % HHBUF)
    I("s_lshl_b32 s57, s68, 7")
    I("s_add_u32 s57, s57, %d" % HBUF)
    I("s_cmp_eq_u32 s67, 2")
    I("s_cselect_b32 s56, s57, s56")
    I("s_cmp_eq_u32 s67, 0")
    I("s_cselect_b32 s56, %d, s56" % WSREC)
    I("s_mov_b64 exec, 0xffffffff")
    I("buffer_store_dword v16, v9, s[36:39], s56 offen sc1")
    I("v_mov_b32 v20, 0")
    I("s_lshl_b32 s57, s33, 8")
    I("s_add_u32 s57, s57, %d" % CNT)
    I("s_cmp_eq_u32 s32, 0")
    I("s_cselect_b32 s56, s57, %d" % WSREC)
    I("s_mov_b64 exec, 1")
    I("buffer_store_dword v20, v9, s[36:39], s56 offen sc1")
    I("s_mov_b64 exec, -1")
    k.label("L_noinit")
    PS = [128 + 8 * i for i in range(NPOLL)]
    def qissue(i):
        I("buffer_load_dwordx4 v[%d:%d], v3, s[36:39], s53 offen sc1" % (PS[i], PS[i] + 3))
        I("buffer_load_dwordx4 v[%d:%d], v3, s[36:39], s53 offen offset:16 sc1" % (PS[i] + 4, PS[i] + 7))
    for i in range(NPOLL):
        sl = SL0 if i == 0 else SL1
        if sl: I("s_sleep %d" % sl)
        qissue(i)
    I("s_mov_b32 s55, %d" % SPIN)
    k.label("L_qpoll")
    for i in range(NPOLL):
        P_ = PS[i]
        I("s_waitcnt vmcnt(%d)" % (2 * (NPOLL - 1)))
        I("v_xor_b32 v5, s35, v%d" % (P_ + 1))
        I("v_xor_b32 v6, s35, v%d" % (P_ + 3))
        I("v_xor_b32 v7, s35, v%d" % (P_ + 5))
        I("v_xor_b32 v8, s35, v%d" % (P_ + 7))
        I("v_or3_b32 v5, v5, v6, v7")
        I("v_or_b32 v5, v5, v8")
        I("v_cmp_ne_u32 vcc, 0, v5")
        I("s_cbranch_vccz L_qok%d" % i)
        qissue(i)
    I("s_sub_u32 s55, s55, 1")
    I("s_cbranch_scc0 L_qpoll")
    for i in range(NPOLL - 1, -1, -1):
        k.label("L_qok%d" % i)
        for t in (0, 2, 4, 6):
            I("v_mov_b32 v%d, v%d" % (Q2 + t, PS[i] + t))
        if i: I("s_branch L_qok")
    k.label("L_qok")
    if prio != prio2: I("s_setprio %d" % prio2)
    I("s_cmp_lg_u32 s34, 0")
    I("s_cbranch_scc1 L_nocnt")
    I("s_mov_b32 s48, s24"); I("s_mov_b32 s49, s25"); I("s_mov_b32 s50, 256"); I("s_mov_b32 s51, 0x20000")
    I("v_mov_b32 v16, 1")
    I("s_mov_b64 exec, 1")
    I("buffer_atomic_add v16, off, s[48:51], 0 sc1")
    I("s_mov_b64 exec, -1")
    k.label("L_nocnt")
    I("v_permlane32_swap_b32 v%d, v%d" % (Q2 + 0, Q2 + 4))
    I("v_permlane32_swap_b32 v%d, v%d" % (Q2 + 2, Q2 + 6))
    I("v_add_f32 v%d, v%d, v%d" % (Q2 + 0, Q2 + 0, Q2 + 4))
    I("v_add_f32 v%d, v%d, v%d" % (Q2 + 2, Q2 + 2, Q2 + 6))
    I("v_permlane16_swap_b32 v%d, v%d" % (Q2 + 0, Q2 + 2))
    I("v_add_f32 v%d, v%d, v%d" % (Q2 + 0, Q2 + 0, Q2 + 2))
    I("v_add_f32_dpp v%d, v%d, v%d row_ror:8 row_mask:0xf bank_mask:0xf" % (Q2 + 1, Q2 + 0, Q2 + 0))
    I("v_cvt_pk_bf16_f32 v%d, v%d, v%d" % (Q2 + 1, Q2 + 1, Q2 + 1))
    I("v_lshl_add_u32 v4, v4, 2, v%d" % g)
    I("s_lshl_b32 s54, s34, 5")
    I("v_add_u32 v4, s54, v4")
    I("v_lshlrev_b32 v4, 1, v4")
    I("ds_write_b16 v4, v%d offset:%d" % (Q2 + 1, L_Q))
    I("s_waitcnt lgkmcnt(0)")
    astamp(3)
    I("s_barrier")

    acollect()
    if warm:
        I("s_lshl_b32 s52, s2, 2")
        I("s_add_u32 s52, s52, s34")
        I("s_lshl_b32 s52, s52, 10")
        I("s_add_u32 s53, s52, 0x100000")
        I("v_lshlrev_b32 v8, 4, v0")
        for mi in range(3):
            I("s_mov_b32 s40, s%d" % (16 + 2 * mi + (0 if mi < 2 else 0))); I("s_mov_b32 s41, s%d" % (17 + 2 * mi)); I("s_mov_b32 s42, %d" % (1376 * 1024)); I("s_mov_b32 s43, 0x20000")
            I("buffer_load_dwordx4 v[100:103], v8, s[40:43], s52 offen%s" % (" nt" if warmnt else ""))
            I("buffer_load_dwordx4 v[100:103], v8, s[40:43], s53 offen%s" % (" nt" if warmnt else ""))
    I("s_cmp_lg_u32 s34, 0")
    I("s_cbranch_scc1 L_noflag")
    I("s_mov_b32 s55, %d" % SPIN)
    I("v_mov_b32 v17, %d" % L_GO)
    k.label("L_gospin")
    I("ds_read_b32 v16, v17")
    I("s_waitcnt lgkmcnt(0)")
    I("v_readfirstlane_b32 s52, v16")
    I("s_cmp_eq_u32 s52, 1")
    I("s_cbranch_scc1 L_gook")
    I("s_sleep 16")
    I("s_sub_u32 s55, s55, 1")
    I("s_cbranch_scc0 L_gospin")
    k.label("L_gook")
    I("s_mov_b32 s55, %d" % SPIN)
    k.label("L_cntpoll")
    I("buffer_load_dword v16, off, s[48:51], 0 sc1")
    I("s_waitcnt vmcnt(0)")
    I("v_readfirstlane_b32 s52, v16")
    I("s_cmp_ge_u32 s52, 256")
    I("s_cbranch_scc1 L_cntok")
    I("s_sleep 64")
    I("s_sub_u32 s55, s55, 1")
    I("s_cbranch_scc0 L_cntpoll")
    k.label("L_cntok")
    I("v_mov_b32 v16, 1")
    I("v_mov_b32 v17, %d" % L_FLAG)
    I("ds_write_b32 v17, v16")
    I("s_waitcnt lgkmcnt(0)")
    k.label("L_noflag")
    stamp(13)

    BW = 112
    I("s_mov_b32 s44, s12"); I("s_mov_b32 s45, s13"); I("s_mov_b32 s46, 0x400000"); I("s_mov_b32 s47, 0x20000")
    I("v_lshlrev_b32 v3, 13, v%d" % g)
    I("v_lshl_add_u32 v3, v%d, 3, v3" % n)
    I("s_lshl_b32 s52, s29, 17")
    I("s_lshl_b32 s53, s34, 15")
    I("s_add_u32 s52, s52, s53")
    I("s_lshl_b32 s53, s30, 7")
    I("s_add_u32 s52, s52, s53")
    I("s_add_u32 s53, s52, 4096")
    for j in range(8):
        I("buffer_load_dwordx2 v[%d:%d], v3, s[44:47], s%d offen offset:%d" % (R + 2 * j, R + 2 * j + 1, 52 + (j >> 2), 1024 * (j & 3)))
    I("v_lshrrev_b32 v4, 3, v%d" % n)
    I("v_lshlrev_b32 v4, 2, v4")
    I("v_add_u32 v4, v4, v%d" % g)
    I("v_and_b32 v5, 7, v%d" % n)
    W = 128
    if warm:
        I("s_cmp_eq_u32 s67, 0")
        I("s_cbranch_scc1 L_wf_ok")
        I("s_mov_b32 s55, %d" % SPIN)
        I("v_mov_b32 v7, %d" % L_FLAG)
        k.label("L_wf_spin")
        I("ds_read_b32 v6, v7")
        I("s_waitcnt lgkmcnt(0)")
        I("v_readfirstlane_b32 s52, v6")
        I("s_cmp_eq_u32 s52, 1")
        I("s_cbranch_scc1 L_wf_ok")
        I("s_sleep 16")
        I("s_sub_u32 s55, s55, 1")
        I("s_cbranch_scc0 L_wf_spin")
        k.label("L_wf_ok")
    I("s_cmp_eq_u32 s67, 1")
    I("s_cbranch_scc1 L_pf_gu")
    I("s_cmp_eq_u32 s67, 2")
    I("s_cbranch_scc1 L_pf_down")
    I("s_waitcnt vmcnt(0)")
    perm4(R, BW)
    I("s_branch L_pf_done")

    k.label("L_pf_gu")
    I("s_mov_b32 s52, 2752*8")
    I("v_mul_lo_u32 v6, v4, s52")
    I("v_lshl_add_u32 v6, v5, 3, v6")
    for mat in range(2):
        I("s_mov_b32 s40, s%d" % (16 + 2 * mat)); I("s_mov_b32 s41, s%d" % (17 + 2 * mat)); I("s_mov_b32 s42, %d" % (512 * 2752)); I("s_mov_b32 s43, 0x20000")
        for ds in range(2):
            I("s_mul_i32 s52, s34, %d" % (128 * 2752))
            I("s_lshl_b32 s53, s66, 6")
            I("s_add_u32 s52, s52, s53")
            if ds: I("s_add_u32 s52, s52, %d" % (64 * 2752))
            raw = W + 16 * (ds * 2 + mat + 1)
            for jj in range(8):
                if not nopref: I("buffer_load_dwordx2 v[%d:%d], v6, s[40:43], s52 offen" % (raw + 2 * jj, raw + 2 * jj + 1))
                if jj < 7: I("s_add_u32 s52, s52, 2752")
    I("s_waitcnt vmcnt(%d)" % (0 if nopref else 32))
    perm4(R, BW)
    I("s_waitcnt vmcnt(0)")
    for i in range(4): perm4(W + 16 * (i + 1), W + 16 * i)
    for t in range(4): I("v_mov_b32 v%d, 0x3f803f80" % (16 + t))
    CS = 20
    for mat in range(2):
        for c in range(4):
            d = 32 + 4 * (mat * 4 + c)
            b0_ = W + 16 * mat + 4 * c
            b1_ = W + 16 * (2 + mat) + 4 * c
            I("v_mfma_f32_16x16x32_bf16 v[%d:%d], v[16:19], v[%d:%d], 0" % (d, d + 3, b0_, b0_ + 3))
            I("v_mfma_f32_16x16x32_bf16 v[%d:%d], v[16:19], v[%d:%d], v[%d:%d]" % (d, d + 3, b1_, b1_ + 3, d, d + 3))
    for t in range(8):
        d = 32 + 4 * t
        I("v_add_f32_dpp v%d, v%d, v%d row_ror:8 row_mask:0xf bank_mask:0xf" % (CS + t, d, d))
    I("s_lshl_b32 s52, s34, 8")
    I("v_lshlrev_b32 v6, 4, v5")
    I("v_add_u32 v6, s52, v6")
    I("s_mov_b64 exec, 0xff")
    I("ds_write_b128 v6, v[%d:%d] offset:%d" % (CS, CS + 3, L_CS))
    I("ds_write_b128 v6, v[%d:%d] offset:%d" % (CS + 4, CS + 7, L_CS + 128))
    I("s_mov_b64 exec, -1")
    I("s_branch L_pf_done")
    k.label("L_pf_down")
    I("v_lshlrev_b32 v6, 13, v4")
    I("v_lshl_add_u32 v6, v5, 3, v6")
    I("s_mov_b32 s40, s20"); I("s_mov_b32 s41, s21"); I("s_mov_b32 s42, %d" % (1376 * 1024)); I("s_mov_b32 s43, 0x20000")
    for i in range(6):
        I("s_lshl_b32 s52, s34, 16")
        I("s_lshl_b32 s53, s68, 6")
        I("s_add_u32 s52, s52, s53")
        if i: I("s_add_u32 s52, s52, %d" % (i * 4 * 65536))
        I("s_add_u32 s53, s52, 4096")
        raw = W + 16 * (i + 1)
        for jj in range(8):
            if not nopref: I("buffer_load_dwordx2 v[%d:%d], v6, s[40:43], s%d offen offset:%d" % (raw + 2 * jj, raw + 2 * jj + 1, 52 + (jj >> 2), 1024 * (jj & 3)))
    I("s_mov_b32 s44, s4"); I("s_mov_b32 s45, s5"); I("s_mov_b32 s46, 2048"); I("s_mov_b32 s47, 0x20000")
    I("v_and_b32 v7, 1, v0")
    I("v_lshl_add_u32 v7, v7, 2, v%d" % g)
    I("v_lshlrev_b32 v7, 1, v7")
    I("v_bfe_u32 v8, v0, 1, 1")
    I("v_lshl_add_u32 v9, v8, 10, v7")
    I("s_lshl_b32 s52, s68, 6")
    I("s_lshl_b32 s53, s34, 4")
    I("s_add_u32 s52, s52, s53")
    I("buffer_load_ushort v15, v9, s[44:47], s52 offen")
    I("s_waitcnt vmcnt(%d)" % (1 if nopref else 49))
    perm4(R, BW)
    I("s_waitcnt vmcnt(0)")
    for i in range(6): perm4(W + 16 * (i + 1), W + 16 * i)
    I("v_lshlrev_b32 v15, 16, v15")
    k.label("L_pf_done")
    stamp(4)

    I("v_bfe_u32 v6, v%d, 1, 1" % n)
    I("v_and_b32 v7, 1, v%d" % n)
    I("v_lshl_or_b32 v6, v7, 1, v6")
    I("v_and_b32 v7, 4, v%d" % n)
    I("v_or_b32 v6, v6, v7")
    I("v_lshlrev_b32 v6, 10, v6")
    I("v_lshl_add_u32 v7, v%d, 5, v6" % g)
    I("s_lshl_b32 s52, s29, 13")
    I("s_add_u32 s52, s52, %d" % OREC)
    I("s_lshl_b32 s53, s34, 7")
    I("s_add_u32 s53, s53, s52")
    I("s_mov_b32 s55, %d" % SPIN)
    I("s_waitcnt lgkmcnt(0)")
    I("s_barrier")
    stamp(5)
    O = 16
    k.label("L_opoll")
    I("buffer_load_dwordx4 v[%d:%d], v7, s[36:39], s53 offen sc1" % (O, O + 3))
    I("buffer_load_dwordx4 v[%d:%d], v7, s[36:39], s53 offen offset:16 sc1" % (O + 4, O + 7))
    I("buffer_load_dwordx2 v[%d:%d], v6, s[36:39], s52 offen offset:512 sc1" % (O + 8, O + 9))
    I("s_waitcnt vmcnt(0)")
    I("v_max3_u32 v12, v%d, v%d, v%d" % (O, O + 1, O + 2))
    I("v_max3_u32 v13, v%d, v%d, v%d" % (O + 3, O + 4, O + 5))
    I("v_max3_u32 v12, v12, v%d, v%d" % (O + 6, O + 7))
    I("v_max3_u32 v13, v13, v%d, v%d" % (O + 8, O + 9))
    I("v_max_u32 v12, v12, v13")
    I("v_cmp_eq_u32 vcc, -1, v12")
    I("s_sub_u32 s55, s55, 1")
    I("s_cbranch_scc1 L_opoll_out")
    I("s_mov_b64 exec, vcc")
    I("s_cbranch_execnz L_opoll")
    k.label("L_opoll_out")
    I("s_mov_b64 exec, -1")
    stamp(6)
    m_, l_ = O + 8, O + 9
    I("v_max_f32_dpp v12, v%d, v%d quad_perm:[2,3,0,1] row_mask:0xf bank_mask:0xf" % (m_, m_))
    I("v_max_f32_dpp v13, v12, v12 row_ror:4 row_mask:0xf bank_mask:0xf")
    I("v_sub_f32 v12, v%d, v13" % m_)
    I("v_exp_f32 v12, v12")
    I("v_mul_f32 v13, v12, v%d" % l_)
    I("v_add_f32_dpp v14, v13, v13 quad_perm:[2,3,0,1] row_mask:0xf bank_mask:0xf")
    I("v_add_f32_dpp v13, v14, v14 row_ror:4 row_mask:0xf bank_mask:0xf")
    I("v_rcp_f32 v13, v13")
    I("v_mul_f32 v12, v12, v13")
    for t in range(8): I("v_mul_f32 v%d, v%d, v12" % (O + t, O + t))
    for t in range(8): I("v_add_f32_dpp v%d, v%d, v%d quad_perm:[2,3,0,1] row_mask:0xf bank_mask:0xf" % (32 + t, O + t, O + t))
    for t in range(8): I("v_add_f32_dpp v%d, v%d, v%d row_ror:4 row_mask:0xf bank_mask:0xf" % (O + t, 32 + t, 32 + t))
    for t in range(4): I("v_cvt_pk_bf16_f32 v%d, v%d, v%d" % (28 + t, O + 2 * t, O + 2 * t + 1))
    D = 32
    for c in range(4):
        I("v_mfma_f32_16x16x32_bf16 v[%d:%d], v[28:31], v[%d:%d], 0" % (D + 4 * c, D + 4 * c + 3, BW + 4 * c, BW + 4 * c + 3))
    I("s_lshl_b32 s52, s34, 9")
    I("s_add_u32 s52, s52, %d" % L_YP)
    I("v_lshlrev_b32 v13, 4, v%d" % n)
    I("v_add_u32 v13, s52, v13")
    I("s_mov_b64 exec, 0xffff")
    for bb in range(2):
        I("ds_write2_b32 v13, v%d, v%d offset0:%d offset1:%d" % (D + bb, D + 4 + bb, 64 * bb, 64 * bb + 1))
        I("ds_write2_b32 v13, v%d, v%d offset0:%d offset1:%d" % (D + 8 + bb, D + 12 + bb, 64 * bb + 2, 64 * bb + 3))
    I("s_mov_b64 exec, -1")
    I("s_waitcnt lgkmcnt(0)")
    I("s_barrier")
    stamp(7)
    I("s_cmp_lg_u32 s34, 0")
    I("s_cbranch_scc1 L_noY")
    I("v_lshlrev_b32 v12, 4, v0")
    I("s_mov_b64 exec, 0xffffffff")
    for w in range(4):
        I("ds_read_b128 v[%d:%d], v12 offset:%d" % (16 + 4 * w, 19 + 4 * w, L_YP + 512 * w))
    I("s_lshl_b32 s52, s2, 9")
    I("s_add_u32 s52, s52, %d" % YREC)
    I("s_mov_b32 s63, 0x%x" % SENT_CLAMP)
    I("s_waitcnt lgkmcnt(2)")
    for t in range(4): I("v_add_f32 v%d, v%d, v%d" % (16 + t, 16 + t, 20 + t))
    I("s_waitcnt lgkmcnt(0)")
    for t in range(4): I("v_add_f32 v%d, v%d, v%d" % (24 + t, 24 + t, 28 + t))
    for t in range(4): I("v_add_f32 v%d, v%d, v%d" % (16 + t, 16 + t, 24 + t))
    for t in range(4): I("v_min_u32 v%d, s63, v%d" % (16 + t, 16 + t))
    I("buffer_store_dwordx4 v[16:19], v12, s[36:39], s52 offen sc1")
    I("s_mov_b64 exec, -1")
    stamp(8)
    k.label("L_noY")
    I("s_cmp_eq_u32 s67, 1")
    I("s_cbranch_scc1 L_gu")
    I("s_cmp_eq_u32 s67, 2")
    I("s_cbranch_scc1 L_down")
    I("s_branch L_hend")

    def a_addr(dst):
        I("v_bfe_u32 v12, v%d, 1, 1" % n)
        I("v_lshlrev_b32 v12, 2, v12")
        I("v_add_u32 v12, v12, v%d" % g)
        I("v_lshlrev_b32 v12, 5, v12")
        I("v_and_b32 v13, 1, v%d" % n)
        I("v_lshl_add_u32 v%d, v13, 4, v12" % dst)
    def poll(name, loads, regs, execmask):
        I("s_mov_b32 s55, %d" % SPIN)
        if execmask is not None: I("s_mov_b64 exec, %s" % execmask)
        k.label(name)
        for l in loads: I(l)
        I("s_waitcnt vmcnt(0)")
        regs = list(regs)
        acc = [12, 13]
        first = [True, True]
        idx = 0
        while regs:
            a_ = acc[idx & 1]
            if first[idx & 1]:
                if len(regs) >= 3:
                    I("v_max3_u32 v%d, v%d, v%d, v%d" % (a_, regs[0], regs[1], regs[2])); regs = regs[3:]
                    first[idx & 1] = False
                else:
                    a_ = acc[0]
                    I("v_max_u32 v%d, v%d, v%d" % (a_, a_, regs[0])); regs = regs[1:]
            else:
                if len(regs) >= 2:
                    I("v_max3_u32 v%d, v%d, v%d, v%d" % (a_, a_, regs[0], regs[1])); regs = regs[2:]
                else:
                    I("v_max_u32 v%d, v%d, v%d" % (a_, a_, regs[0])); regs = regs[1:]
            idx += 1
        if not first[1]: I("v_max_u32 v12, v12, v13")
        I("v_cmp_eq_u32 vcc, -1, v12")
        I("s_sub_u32 s55, s55, 1")
        I("s_cbranch_scc1 %s_out" % name)
        I("s_mov_b64 exec, vcc")
        I("s_cbranch_execnz %s" % name)
        k.label(name + "_out")
        I("s_mov_b64 exec, -1")
    AMASK = "s[70:71]"

    k.label("L_gu")
    AD = 64
    a_addr(14)
    I("s_mov_b32 s70, 0x000f000f"); I("s_mov_b32 s71, 0x000f000f")
    I("v_cmp_eq_u32 vcc, 4, v%d" % n)
    I("v_mov_b32 v15, 0x3f803f80")
    for t in range(8): I("v_cndmask_b32 v%d, 0, v15, vcc" % (AD + t))
    I("s_lshl_b32 s52, s34, 9")
    I("s_add_u32 s52, s52, %d" % HBUF)
    CSUM = 72
    I("v_and_b32 v6, 31, v0")
    I("v_lshlrev_b32 v6, 2, v6")
    I("v_add_u32 v6, %d, v6" % L_CS)
    for w in range(4):
        I("ds_read2_b32 v[%d:%d], v6 offset0:%d offset1:%d" % (32 + 2 * w, 33 + 2 * w, 64 * w, 64 * w + 32))
    I("v_and_b32 v7, 1, v0")
    I("v_lshlrev_b32 v7, 4, v7")
    I("v_bfe_u32 v8, v0, 1, 1")
    I("v_lshl_add_u32 v7, v8, 2, v7")
    I("v_bfe_u32 v8, v0, 4, 1")
    I("v_lshl_add_u32 v7, v8, 3, v7")
    I("s_lshl_b32 s53, s34, 5")
    I("v_add_u32 v7, s53, v7")
    I("v_lshlrev_b32 v8, 4, v%d" % n)
    I("s_lshl_b32 s53, s34, 9")
    I("v_add_u32 v8, s53, v8")
    I("s_waitcnt lgkmcnt(0)")
    for t in range(2):
        I("v_add_f32 v%d, v%d, v%d" % (32 + t, 32 + t, 34 + t))
        I("v_add_f32 v%d, v%d, v%d" % (36 + t, 36 + t, 38 + t))
        I("v_add_f32 v%d, v%d, v%d" % (CSUM + t, 32 + t, 36 + t))
    I("v_lshlrev_b32 v9, 2, v0")
    I("v_add_u32 v9, %d, v9" % L_GUD)
    I("v_lshrrev_b32 v10, 5, v0")
    I("v_lshlrev_b32 v10, 4, v10")
    I("v_bfe_u32 v11, v0, 3, 2")
    I("v_lshl_add_u32 v11, v11, 5, v10")
    I("v_and_b32 v3, 7, v0")
    I("v_lshl_add_u32 v11, v3, 1, v11")
    poll("L_hpoll",
         ["buffer_load_dwordx4 v[%d:%d], v14, s[36:39], s52 offen offset:%d sc1" % (AD + 4 * ds, AD + 4 * ds + 3, 256 * ds) for ds in range(2)],
         range(AD, AD + 8), AMASK)
    stamp(9)
    DG = 32
    S = 92
    for ds in range(2):
        I("v_mfma_f32_16x16x32_bf16 v[%d:%d], v[%d:%d], v[%d:%d], %s" % (S, S + 3, AD + 4 * ds, AD + 4 * ds + 3, AD + 4 * ds, AD + 4 * ds + 3, "0" if ds == 0 else "v[%d:%d]" % (S, S + 3)))
        for mat in range(2):
            for c in range(4):
                d = DG + 4 * (mat * 4 + c)
                bb = W + 16 * (ds * 2 + mat) + 4 * c
                I("v_mfma_f32_16x16x32_bf16 v[%d:%d], v[%d:%d], v[%d:%d], %s" % (d, d + 3, AD + 4 * ds, AD + 4 * ds + 3, bb, bb + 3, "0" if ds == 0 else "v[%d:%d]" % (d, d + 3)))
    I("s_mov_b64 s[72:73], 2"); I("s_mov_b64 s[74:75], 4"); I("s_mov_b64 s[76:77], 8")
    I("v_cndmask_b32 v76, v%d, v%d, s[72:73]" % (S, S + 1))
    I("v_cndmask_b32 v76, v76, v%d, s[74:75]" % (S + 2))
    I("v_cndmask_b32 v76, v76, v%d, s[76:77]" % (S + 3))
    for t in range(8):
        d = DG + 4 * t
        I("v_add_f32_dpp v%d, v%d, v%d row_ror:8 row_mask:0xf bank_mask:0x3" % (80 + t, d + 2, d + 0))
        I("v_add_f32_dpp v%d, v%d, v%d row_ror:8 row_mask:0xf bank_mask:0xc" % (80 + t, d + 1, d + 3))
    I("s_mov_b64 exec, 0x000f000f")
    I("ds_write_b32 v7, v76 offset:%d" % L_STAT)
    I("s_mov_b64 exec, 0xffff")
    I("ds_write_b128 v8, v[80:83] offset:%d" % L_GUD)
    I("ds_write_b128 v8, v[84:87] offset:%d" % (L_GUD + 256))
    I("s_mov_b64 exec, -1")
    I("s_waitcnt lgkmcnt(0)")
    I("s_barrier")
    stamp(10)
    I("s_cmp_lg_u32 s34, 0")
    I("s_cbranch_scc1 L_hend")
    for w in range(4):
        I("ds_read_b128 v[%d:%d], v10 offset:%d" % (48 + 4 * w, 51 + 4 * w, L_STAT + 32 * w))
    for w in range(4):
        I("ds_read2st64_b32 v[%d:%d], v9 offset0:%d offset1:%d" % (32 + 2 * w, 33 + 2 * w, 2 * w, 2 * w + 1))
    I("s_lshl_b32 s52, s66, 7")
    I("s_add_u32 s52, s52, %d" % HHBUF)
    I("s_waitcnt lgkmcnt(4)")
    for w in range(4):
        I("v_add_f32 v%d, v%d, v%d" % (48 + 4 * w, 48 + 4 * w, 49 + 4 * w))
        I("v_add_f32 v%d, v%d, v%d" % (50 + 4 * w, 50 + 4 * w, 51 + 4 * w))
    I("v_add_f32 v48, v48, v52"); I("v_add_f32 v50, v50, v54")
    I("v_add_f32 v56, v56, v60"); I("v_add_f32 v58, v58, v62")
    I("v_add_f32 v48, v48, v56"); I("v_add_f32 v50, v50, v58")
    I("v_mul_f32 v50, 0x3b000000, v50")
    I("v_mul_f32 v48, 0x3b000000, v48")
    I("v_fma_f32 v48, -v50, v50, v48")
    I("v_max_f32 v48, 0, v48")
    rnd(48, 48)
    I("v_add_f32 v48, 0x3727c5ac, v48")
    rnd(48, 48)
    I("v_sqrt_f32 v48, v48")
    rnd(48, 48)
    I("v_rcp_f32 v48, v48")
    rnd(50, 50)
    I("s_waitcnt lgkmcnt(0)")
    for t in range(2):
        I("v_add_f32 v%d, v%d, v%d" % (32 + t, 32 + t, 34 + t))
        I("v_add_f32 v%d, v%d, v%d" % (36 + t, 36 + t, 38 + t))
    for t in range(2):
        I("v_add_f32 v%d, v%d, v%d" % (32 + t, 32 + t, 36 + t))
    for t in range(2):
        I("v_fma_f32 v%d, -v50, v%d, v%d" % (32 + t, CSUM + t, 32 + t))
    for t in range(2):
        I("v_mul_f32 v%d, v%d, v48" % (32 + t, 32 + t))
    I("v_cvt_pk_bf16_f32 v36, v32, v33")
    I("v_lshlrev_b32 v32, 16, v36")
    I("v_and_b32 v33, 0xffff0000, v36")
    I("v_max_f32 v32, 0, v32")
    I("v_mul_f32 v32, v32, v33")
    I("v_mov_b32_dpp v33, v32 quad_perm:[1,0,3,2] row_mask:0xf bank_mask:0xf")
    I("v_cvt_pk_bf16_f32 v36, v32, v33")
    I("s_mov_b32 s63, 0x%x" % SENT_CLAMP)
    I("v_min_u32 v36, s63, v36")
    I("s_mov_b32 s70, 0x55555555"); I("s_mov_b32 s71, 0x55555555")
    I("s_mov_b64 exec, s[70:71]")
    I("buffer_store_dword v36, v11, s[36:39], s52 offen sc1")
    I("s_mov_b64 exec, -1")
    I("s_branch L_hend")

    k.label("L_down")
    I("v_lshrrev_b32 v5, 2, v0")
    I("v_lshlrev_b32 v5, 12, v5")
    I("v_bfe_u32 v6, v0, 1, 1")
    I("v_lshl_add_u32 v5, v6, 8, v5")
    I("v_and_b32 v7, 1, v0")
    I("v_lshl_add_u32 v5, v7, 4, v5")
    I("s_lshr_b32 s52, s68, 1")
    I("s_lshl_b32 s52, s52, 9")
    I("s_and_b32 s53, s68, 1")
    I("s_lshl_b32 s53, s53, 7")
    I("s_add_u32 s52, s52, s53")
    I("s_lshl_b32 s53, s34, 5")
    I("s_add_u32 s52, s52, s53")
    I("s_add_u32 s52, s52, %d" % YREC)
    I("s_add_u32 s56, s52, 65536")
    I("v_lshlrev_b32 v9, 4, v6")
    I("v_lshl_add_u32 v9, v7, 3, v9")
    I("v_lshrrev_b32 v10, 5, v0")
    I("v_lshl_add_u32 v9, v10, 2, v9")
    I("v_lshlrev_b32 v11, 6, v6")
    I("v_lshl_add_u32 v11, v7, 3, v11")
    I("v_lshl_add_u32 v11, v10, 2, v11")
    I("s_lshl_b32 s53, s34, 4")
    I("v_add_u32 v11, s53, v11")
    Y = 16
    poll("L_ypoll",
         ["buffer_load_dwordx4 v[%d:%d], v5, s[36:39], s%d offen sc1" % (Y + 4 * t, Y + 4 * t + 3, 52 if t == 0 else 56) for t in range(2)],
         range(Y, Y + 8), None)
    for t in range(4):
        I("v_add_f32 v%d, v%d, v%d" % (Y + t, Y + t, Y + 4 + t))
    I("v_permlane32_swap_b32 v%d, v%d" % (Y + 0, Y + 2))
    I("v_permlane32_swap_b32 v%d, v%d" % (Y + 1, Y + 3))
    I("v_add_f32 v%d, v%d, v%d" % (Y + 0, Y + 0, Y + 2))
    I("v_add_f32 v%d, v%d, v%d" % (Y + 1, Y + 1, Y + 3))
    I("v_permlane16_swap_b32 v%d, v%d" % (Y + 0, Y + 1))
    I("v_add_f32 v%d, v%d, v%d" % (Y + 0, Y + 0, Y + 1))
    I("v_add_f32_dpp v20, v%d, v%d row_ror:4 row_mask:0xf bank_mask:0xf" % (Y + 0, Y + 0))
    I("v_add_f32_dpp v21, v20, v20 row_ror:8 row_mask:0xf bank_mask:0xf")
    rnd(21, 21)
    I("v_add_f32 v21, v21, v15")
    I("v_mov_b32 v20, v21")
    I("v_permlane16_swap_b32 v20, v21")
    I("v_cvt_pk_bf16_f32 v22, v20, v21")
    I("s_mov_b32 s63, 0x%x" % SENT_CLAMP)
    I("v_min_u32 v22, s63, v22")
    I("s_lshl_b32 s52, s68, 2")
    I("s_add_u32 s52, s52, s34")
    I("s_lshl_b32 s52, s52, 5")
    I("s_add_u32 s52, s52, %d" % HBUF)
    I("s_mov_b32 s70, 0xf"); I("s_mov_b32 s71, 0xf")
    I("s_mov_b64 exec, s[70:71]")
    I("buffer_store_dword v22, v9, s[36:39], s52 offen sc1")
    I("ds_write_b32 v11, v22 offset:%d" % L_HB)
    I("s_mov_b64 exec, -1")
    stamp(17)
    AD = 64
    a_addr(14)
    I("s_mov_b32 s70, 0x000f000f"); I("s_mov_b32 s71, 0x000f000f")
    I("s_add_u32 s40, s26, %d" % HHBUF)
    I("s_addc_u32 s41, s27, 0")
    I("s_mov_b32 s42, 5504")
    I("s_mov_b32 s43, 0x20000")
    for t in range(24): I("v_mov_b32 v%d, 0" % (AD + t))
    for i in range(6):
        I("s_add_u32 s%d, s34, %d" % (56 + i, 4 * i))
        I("s_lshl_b32 s%d, s%d, 8" % (56 + i, 56 + i))
    I("v_lshlrev_b32 v8, 4, v%d" % n)
    I("s_lshl_b32 s53, s34, 8")
    I("v_add_u32 v8, s53, v8")
    I("v_lshlrev_b32 v9, 2, v0")
    I("v_add_u32 v9, %d, v9" % L_DP)
    I("v_lshlrev_b32 v10, 1, v0")
    I("v_lshrrev_b32 v11, 5, v0")
    I("v_lshlrev_b32 v11, 10, v11")
    I("v_and_b32 v3, 31, v0")
    I("v_lshl_add_u32 v11, v3, 1, v11")
    I("s_mov_b32 s44, s22"); I("s_mov_b32 s45, s23"); I("s_mov_b32 s46, 2048"); I("s_mov_b32 s47, 0x20000")
    poll("L_hhpoll",
         ["buffer_load_dwordx4 v[%d:%d], v14, s[40:43], s%d offen sc1" % (AD + 4 * i, AD + 4 * i + 3, 56 + i) for i in range(6)],
         range(AD, AD + 24), AMASK)
    stamp(9)
    for i in range(6):
        for c in range(4):
            d = 32 + 4 * c
            bb = W + 16 * i + 4 * c
            I("v_mfma_f32_16x16x32_bf16 v[%d:%d], v[%d:%d], v[%d:%d], %s" % (d, d + 3, AD + 4 * i, AD + 4 * i + 3, bb, bb + 3, "0" if i == 0 else "v[%d:%d]" % (d, d + 3)))
    for c in range(4):
        d = 32 + 4 * c
        I("v_add_f32_dpp v%d, v%d, v%d row_ror:8 row_mask:0xf bank_mask:0x3" % (48 + c, d + 2, d + 0))
        I("v_add_f32_dpp v%d, v%d, v%d row_ror:8 row_mask:0xf bank_mask:0xc" % (48 + c, d + 1, d + 3))
    I("s_mov_b64 exec, 0xffff")
    I("ds_write_b128 v8, v[48:51] offset:%d" % L_DP)
    I("s_mov_b64 exec, -1")
    I("s_waitcnt lgkmcnt(0)")
    I("s_barrier")
    stamp(10)
    I("s_cmp_lg_u32 s34, 0")
    I("s_cbranch_scc1 L_hend")
    for w in range(2):
        I("ds_read2st64_b32 v[%d:%d], v9 offset0:%d offset1:%d" % (32 + 2 * w, 33 + 2 * w, 2 * w, 2 * w + 1))
    I("ds_read_u16 v40, v10 offset:%d" % L_HB)
    I("s_lshl_b32 s52, s68, 6")
    I("s_waitcnt lgkmcnt(0)")
    I("v_add_f32 v32, v32, v33")
    I("v_add_f32 v34, v34, v35")
    I("v_add_f32 v32, v32, v34")
    rnd(32, 32)
    I("v_lshlrev_b32 v35, 16, v40")
    I("v_add_f32 v32, v32, v35")
    I("v_mov_b32_dpp v33, v32 quad_perm:[1,0,3,2] row_mask:0xf bank_mask:0xf")
    I("v_cvt_pk_bf16_f32 v34, v32, v33")
    I("s_mov_b32 s70, 0x55555555"); I("s_mov_b32 s71, 0x55555555")
    I("s_mov_b64 exec, s[70:71]")
    I("buffer_store_dword v34, v11, s[44:47], s52 offen")
    I("s_cmp_lg_u32 s68, 0")
    I("s_cbranch_scc1 L_noepoch")
    I("v_mov_b32 v35, s35")
    I("s_mov_b64 exec, 1")
    I("buffer_store_dword v35, off, s[36:39], 0 offset:%d sc1" % EPOCH)
    k.label("L_noepoch")
    I("s_mov_b64 exec, -1")
    k.label("L_hend")
    stamp(11)
    stamp_flush()
    k.label("L_end")
    I("s_endpgm")

    body = k.finish()
    for p in k.problems: print("HAZARD-EDGE:", p)
    nv = 256
    out = [HEADER.rstrip()]
    out.append("; Override launch geometry by editing the next line (default: block=256,")
    out.append("; @launch grid=(256,1,1) block=(512,1,1) lds=%d" % LDS_BYTES)
    out.append('.amdgcn_target "amdgcn-amd-amdhsa--gfx950"')
    out.append(".text")
    out.append(".globl %s" % KNAME)
    out.append(".p2align 8")
    out.append(".type %s,@function" % KNAME)
    out.append("%s:" % KNAME)
    for ln in body:
        out.append(ln if ln.endswith(":") else "    " + ln)
    out.append('.section .rodata,"a"')
    out.append(".p2align 6")
    out.append(".amdhsa_kernel %s" % KNAME)
    out.append("  .amdhsa_next_free_vgpr %d" % nv)
    out.append("  .amdhsa_next_free_sgpr 102")
    out.append("  .amdhsa_accum_offset %d" % nv)
    out.append("  .amdhsa_group_segment_fixed_size 0")
    out.append("  .amdhsa_kernarg_size 96")
    out.append("  .amdhsa_user_sgpr_count 2")
    out.append("  .amdhsa_user_sgpr_kernarg_segment_ptr 1")
    out.append("  .amdhsa_system_sgpr_workgroup_id_x 1")
    out.append(".end_amdhsa_kernel")
    open(path, "w").write("\n".join(out) + "\n")

if __name__ == "__main__":
    import argparse
    ap = argparse.ArgumentParser()
    ap.add_argument("out")
    ap.add_argument("--stamps", action="store_true")
    ap.add_argument("--NS", type=int, default=26)
    ap.add_argument("--NPARK", type=int, default=2)
    ap.add_argument("--nopref", action="store_true")
    ap.add_argument("--nocomp", action="store_true")
    ap.add_argument("--prio", type=int, default=0)
    ap.add_argument("--prio2", type=int, default=0)
    ap.add_argument("--xf", type=int, default=None)
    ap.add_argument("--wqcap", type=int, default=32)
    ap.add_argument("--XG", type=int, default=6)
    ap.add_argument("--warm", action="store_true")
    ap.add_argument("--contig", action="store_true")
    ap.add_argument("--SL0", type=int, default=22)
    ap.add_argument("--SL1", type=int, default=22)
    ap.add_argument("--NPOLL", type=int, default=3)
    ap.add_argument("--warmnt", action="store_true")
    ap.add_argument("--CAP", type=int, default=34)
    ap.add_argument("--b0", action="store_true")
    a = ap.parse_args()
    gen(a.out, contig=a.contig, NS=a.NS, CAP=a.CAP, stamps=a.stamps, b0=a.b0, NPARK=a.NPARK, nopref=a.nopref, nocomp=a.nocomp, prio=a.prio, prio2=a.prio2, xf=a.xf, wqcap=a.wqcap, XG=a.XG, warm=a.warm, warmnt=a.warmnt, SL0=a.SL0, SL1=a.SL1, NPOLL=a.NPOLL)
```

```python
import sys
from asmlib import K

KNAME = "sequential_preLN__gqa_block_cached__glu_gated_reglu__decode_kernel"
REF = "sequential_preLN__gqa_block_cached__glu_gated_reglu__decode.s.ref"
HEADER = open(REF).read().split("; Override")[0]

EPOCH = 0
CNT = 0x1000
QG = 0x10000
OREC = 0x100000
YREC = 0x140000
HBUF = 0x160000
HHBUF = 0x161000
DBG = 0x200000
WSREC = 0x300000
L_Q = 0x000
L_FLAG = 0x100
L_GO = 0x104
L_MLP = 0x120
L_PART = 0x200
L_YP = 0xA00
L_GUD = 0x1200
L_STAT = 0x1A00
L_CS = 0x1B00
L_DP = 0x1200
L_HB = 0x1F00
LDS_BYTES = 0x2000

SENT_CLAMP = 0xFFFFFFFE
SPIN = 1 << 14

def gen(path, contig=False, NS=26, CAP=34, stamps=False, NPARK=2, XP=(2, 6, 10, 14), b0=False, nopref=False, nocomp=False, prio=0, prio2=0, xf=None, wqcap=32, XG=6, warm=False, warmnt=False, SL0=22, SL1=22, NPOLL=3, rot=0, tl=False, RD=2, ntq=False, nto=False, ntf=False, xp=None):
    NFILL = NPARK + RD
    XF = ((NS - NFILL - RD - 2) // RD) * RD
    if RD != 2: XP = tuple(RD * (1 + 2 * i) if RD == 2 else RD * (1 + i) for i in range(4))
    assert XG % RD == 0
    if xf is not None: XF = xf
    if xp is not None: XP = tuple(int(x) for x in xp.split(','))
    assert NPARK == 0 or max(XP[:NPARK]) < NS - NPARK - RD
    assert XF >= 0
    k = K()
    I = k.I
    vST = 250
    nst = [0]
    def stamp(idx):
        if not stamps: return
        I("s_memrealtime s[98:99]")
        I("s_waitcnt lgkmcnt(0)")
        I("v_writelane_b32 v%d, s98, %d" % (vST, idx))
    apend = []
    def astamp(idx):
        if not stamps: return
        r = 78 + 2 * len(apend)
        assert r <= 96
        I("s_memrealtime s[%d:%d]" % (r, r + 1))
        apend.append((idx, r))
    def acollect(keep=0):
        if not stamps: return
        I("s_waitcnt lgkmcnt(0)")
        for idx, r in apend: I("v_writelane_b32 v%d, s%d, %d" % (vST, r, idx))
        del apend[keep:]
    def stamp_flush():
        if not stamps: return
        I("s_mov_b64 exec, -1")
        I("s_getreg_b32 s98, hwreg(HW_REG_XCC_ID)")
        I("v_writelane_b32 v%d, s98, 63" % vST)
        I("s_lshl_b32 s98, s2, 3")
        I("s_add_u32 s98, s98, s28")
        I("s_lshl_b32 s98, s98, 8")
        I("s_add_u32 s98, s98, %d" % DBG)
        I("v_lshlrev_b32 v%d, 2, v0" % (vST + 1))
        I("buffer_store_dword v%d, v%d, s[36:39], s98 offen" % (vST, vST + 1))
        if tl:
            I("s_add_u32 s98, s98, 0x80000")
            I("buffer_store_dword v%d, v%d, s[36:39], s98 offen" % (vST - 1, vST + 1))

    def rnd(dst, src):
        I("v_cvt_pk_bf16_f32 v%d, v%d, v%d" % (dst, src, src))
        I("v_and_b32 v%d, 0xffff0000, v%d" % (dst, dst))

    def swap_reduce(op, v, t):
        I("v_mov_b32 v%d, v%d" % (t, v))
        I("v_permlane16_swap_b32 v%d, v%d" % (t, v))
        I("%s v%d, v%d, v%d" % (op, v, v, t))
        I("v_mov_b32 v%d, v%d" % (t, v))
        I("v_permlane32_swap_b32 v%d, v%d" % (t, v))
        I("%s v%d, v%d, v%d" % (op, v, v, t))

    I("s_cmp_ge_u32 s2, 256")
    I("s_cbranch_scc1 L_end")
    I("s_load_dwordx16 s[4:19], s[0:1], 0")
    I("s_load_dwordx8 s[20:27], s[0:1], 64")
    I("v_lshrrev_b32 v1, 6, v0")
    I("v_and_b32 v0, 63, v0")
    I("v_readfirstlane_b32 s28, v1")
    I("s_lshr_b32 s29, s2, 3")
    I("s_and_b32 s30, s2, 7")
    I("s_bfe_u32 s31, s2, 0x10001")
    I("s_bfe_u32 s32, s2, 0x10002")
    I("s_lshl_b32 s32, s32, 1")
    I("s_and_b32 s33, s2, 1")
    I("s_or_b32 s32, s32, s33")
    I("s_lshl_b32 s33, s31, 5")
    I("s_add_u32 s33, s33, s29")
    I("s_mov_b32 s66, s33")
    I("s_sub_u32 s68, s33, 44")
    I("s_cmp_lt_u32 s33, 43")
    I("s_cselect_b32 s67, 1, 0")
    I("s_cmp_lt_u32 s68, 16")
    I("s_cselect_b32 s67, 2, s67")
    I("s_bfe_u32 s69, s29, 0x20001")
    I("s_cmp_lg_u32 s69, s32")
    I("s_cselect_b32 s67, 0, s67")
    if stamps:
        I("v_mov_b32 v%d, 0" % vST)
        if tl: I("v_mov_b32 v%d, 0" % (vST - 1))
        I("s_memrealtime s[78:79]")
    I("s_waitcnt lgkmcnt(0)")
    if stamps:
        I("v_writelane_b32 v%d, s78, 0" % vST)
        astamp(12)
    I("s_mov_b32 s36, s26")
    I("s_mov_b32 s37, s27")
    I("s_mov_b32 s38, %d" % WSREC)
    I("s_mov_b32 s39, 0x20000")
    I("s_cmp_ge_u32 s28, 4")
    I("s_cbranch_scc1 L_helper")

    vOff = 1; vQ = 2; vAcc = 6; vM = 14; vL = 15
    a = [16, 17, 18, 19]; u0 = 20; u1 = 21; vw = 22; vt = 23; vsc = 24; vmx = 25; vmn = 26; vp = 27; val = 28
    vplo = 29; vphi = 30; vT = [31, 32, 34, 35]; vCA = 33
    RING = [36 + 32 * i for i in range(RD)]
    sVAL = [55, 56, 70, 71]
    P0 = 36 + 32 * RD
    PK = [P0 + 32 * i for i in range(NPARK)]
    assert P0 + 32 * max(NPARK, 1) <= 248
    I("v_lshlrev_b32 v%d, 4, v0" % vOff)
    I("s_lshl_b32 s52, s33, 21")
    I("s_add_u32 s40, s6, s52")
    I("s_addc_u32 s41, s7, 0")
    I("s_mov_b32 s42, 0x200000")
    I("s_mov_b32 s43, 0x20000")
    I("s_add_u32 s44, s8, s52")
    I("s_addc_u32 s45, s9, 0")
    I("s_mov_b32 s46, 0x200000")
    I("s_mov_b32 s47, 0x20000")
    I("s_mov_b32 s48, s26")
    I("s_mov_b32 s49, s27")
    I("s_mov_b32 s50, 0")
    I("s_mov_b32 s51, 0x20000")
    if contig:
        I("s_mul_i32 s60, s32, %d" % (4 * NS))
    else:
        I("s_lshl_b32 s60, s32, 2")
    I("s_add_u32 s60, s60, s28")
    USH = 2 if contig else 4
    if rot:
        I("s_mul_i32 s58, s33, %d" % rot)
    def rotate():
        if rot:
            I("s_add_u32 s52, s52, s58")
            I("s_and_b32 s52, s52, 511")
    I("s_lshl_b32 s61, s33, 8")
    I("s_add_u32 s61, s61, %d" % CNT)
    I("v_mov_b32 v%d, s61" % vCA)
    if b0: I("s_barrier")
    outstanding = [0]
    def paced():
        if outstanding[0] >= CAP:
            I("s_waitcnt vmcnt(%d)" % (CAP - 1))
            outstanding[0] = CAP - 1
        outstanding[0] += 1
    def ld(base, kv, j, soff="s52"):
        r = base + 16 * kv + 4 * j
        I("buffer_load_dwordx4 v[%d:%d], v%d, %s, %s offen offset:%d nt" % (r, r + 3, vOff, "s[40:43]" if kv == 0 else "s[44:47]", soff, 1024 * j))
    def issue_atomic(slot):
        I("s_cmp_lt_u32 s54, %d" % NS)
        I("s_cselect_b32 s50, 0, %d" % WSREC)
        I("v_mov_b32 v%d, 1" % vT[slot])
        I("s_mov_b64 exec, 1")
        I("buffer_atomic_add v%d, v%d, s[48:51], 0 offen sc0 sc1" % (vT[slot], vCA))
        I("s_mov_b64 exec, -1")
        I("s_add_u32 s54, s54, 1")
    for ci, base in enumerate(PK + RING):
        I("s_add_u32 s52, s60, %d" % (ci << USH))
        rotate()
        I("s_lshl_b32 s52, s52, 12")
        if ci == NPARK: I("s_mov_b32 s54, %d" % NFILL)
        if ci >= NPARK:
            paced(); issue_atomic(ci - NPARK)
        for kv in range(2):
            for j in range(4):
                paced(); ld(base, kv, j)
        if ci < 6: astamp(27 + ci)
    I("s_mov_b32 s53, %d" % NFILL)
    for i in range(RD): I("s_mov_b32 s%d, 1" % sVAL[i])
    I("s_mov_b32 s57, 0")
    for i in range(8): I("v_mov_b32 v%d, 0" % (vAcc + i))
    I("v_mov_b32 v%d, 0xf149f2ca" % vM)
    I("v_mov_b32 v%d, 0" % vL)
    acollect(keep=1)
    stamp(1)
    I("s_barrier")
    I("v_and_b32 v%d, 15, v0" % vt)
    I("v_lshlrev_b32 v%d, 4, v%d" % (vt, vt))
    I("ds_read_b128 v[%d:%d], v%d offset:%d" % (vQ, vQ + 3, vt, L_Q))
    I("s_waitcnt lgkmcnt(0)")
    stamp(2)

    def consume(base, wait=None, reload=None):
        if nocomp:
            for kv in range(2):
                for j in range(4):
                    if wait: wait(kv, j)
                    r = base + 16 * kv + 4 * j
                    I("v_xor_b32 v%d, v%d, v%d" % (vAcc + j, r, vAcc + j))
                    if reload: reload(kv, j)
            return
        for j in range(4):
            if wait: wait(0, j)
            r = base + 4 * j
            I("v_dot2_f32_bf16 v%d, v%d, v%d, 0" % (a[j], r, vQ))
            for t in range(1, 4):
                I("v_dot2_f32_bf16 v%d, v%d, v%d, v%d" % (a[j], r + t, vQ + t, a[j]))
            if reload: reload(0, j)
        I("v_add_f32_dpp v%d, v%d, v%d row_ror:8 row_mask:0xf bank_mask:0x3" % (u0, a[0], a[0]))
        I("v_add_f32_dpp v%d, v%d, v%d row_ror:8 row_mask:0xf bank_mask:0xc" % (u0, a[2], a[2]))
        I("v_add_f32_dpp v%d, v%d, v%d row_ror:8 row_mask:0xf bank_mask:0x3" % (u1, a[1], a[1]))
        I("v_add_f32_dpp v%d, v%d, v%d row_ror:8 row_mask:0xf bank_mask:0xc" % (u1, a[3], a[3]))
        I("v_add_f32_dpp v%d, v%d, v%d row_half_mirror row_mask:0xf bank_mask:0x5" % (vw, u0, u0))
        I("v_add_f32_dpp v%d, v%d, v%d row_half_mirror row_mask:0xf bank_mask:0xa" % (vw, u1, u1))
        I("v_add_f32_dpp v%d, v%d, v%d quad_perm:[1,0,3,2] row_mask:0xf bank_mask:0xf" % (vt, vw, vw))
        I("v_add_f32_dpp v%d, v%d, v%d quad_perm:[2,3,0,1] row_mask:0xf bank_mask:0xf" % (vw, vt, vt))
        rnd(vw, vw)
        I("v_mul_f32 v%d, 0x3db504f3, v%d" % (vw, vw))
        rnd(vw, vw)
        I("v_mul_f32 v%d, 0x3fb8aa3b, v%d" % (vsc, vw))
        I("v_max_f32_dpp v%d, v%d, v%d row_ror:4 row_mask:0xf bank_mask:0xf" % (vmx, vsc, vsc))
        I("v_max_f32_dpp v%d, v%d, v%d row_ror:8 row_mask:0xf bank_mask:0xf" % (vmn, vmx, vmx))
        I("v_max_f32 v%d, v%d, v%d" % (vmn, vmn, vM))
        I("v_sub_f32 v%d, v%d, v%d" % (vp, vsc, vmn))
        I("v_sub_f32 v%d, v%d, v%d" % (val, vM, vmn))
        I("v_exp_f32 v%d, v%d" % (vp, vp))
        I("v_exp_f32 v%d, v%d" % (val, val))
        I("v_mov_b32 v%d, v%d" % (vM, vmn))
        I("v_cvt_pk_bf16_f32 v%d, v%d, 0" % (vplo, vp))
        I("v_lshlrev_b32 v%d, 16, v%d" % (vphi, vplo))
        I("v_fma_f32 v%d, v%d, v%d, v%d" % (vL, vL, val, vphi))
        for i in range(8):
            I("v_mul_f32 v%d, v%d, v%d" % (vAcc + i, vAcc + i, val))
        for j in range(4):
            if wait: wait(1, j)
            r = base + 16 + 4 * j
            for t in range(4):
                I("v_dot2c_f32_bf16_dpp v%d, v%d, v%d row_newbcast:%d row_mask:0xf bank_mask:0xf" % (vAcc + 2 * t, vplo, r + t, 4 * j))
                I("v_dot2c_f32_bf16_dpp v%d, v%d, v%d row_newbcast:%d row_mask:0xf bank_mask:0xf" % (vAcc + 2 * t + 1, vphi, r + t, 4 * j))
            if reload: reload(1, j)

    k.label("L_loop")
    for slot, base in enumerate(RING):
        if slot == 0:
            if stamps:
                I("s_and_b32 s62, s57, 7")
                I("s_cmp_lg_u32 s62, 0")
                I("s_cbranch_scc1 L_nost")
                I("s_memrealtime s[98:99]")
                I("s_lshr_b32 s62, s57, 3")
                I("s_add_u32 m0, s62, 20")
                I("s_waitcnt lgkmcnt(0)")
                I("s_nop 1")
                I("v_writelane_b32 v%d, s98, m0" % vST)
                k.label("L_nost")
            for pi in range(NPARK):
                I("s_cmp_eq_u32 s57, %d" % XP[pi])
                I("s_cbranch_scc1 L_park%d" % pi)
                k.label("L_park%d_ret" % pi)
            I("s_cmp_eq_u32 s57, %d" % XF)
            I("s_cbranch_scc1 L_flag")
            k.label("L_flag_ret")
            I("s_cmp_eq_u32 s57, %d" % XG)
            I("s_cbranch_scc1 L_go")
            k.label("L_go_ret")
        I("s_cmp_eq_u32 s%d, 0" % sVAL[slot])
        I("s_cbranch_scc1 L_fin")
        I("s_waitcnt vmcnt(%d)" % (9 * RD - 2))
        I("v_readfirstlane_b32 s52, v%d" % vT[slot])
        I("s_lshl_b32 s62, s53, %d" % USH)
        I("s_add_u32 s62, s62, s60")
        I("s_add_u32 s52, s52, %d" % (NS * 16))
        I("s_cmp_lt_u32 s53, %d" % NS)
        I("s_cselect_b32 s52, s62, s52")
        I("s_add_u32 s53, s53, 1")
        I("s_cmp_lt_u32 s52, 512")
        I("s_cselect_b32 s42, 0x200000, 0")
        I("s_cselect_b32 s46, 0x200000, 0")
        I("s_cselect_b32 s%d, 1, 0" % sVAL[slot])
        rotate()
        I("s_lshl_b32 s52, s52, 12")
        issue_atomic(slot)
        def wait(kv, j):
            if not (kv == 0 and j == 0):
                I("s_waitcnt vmcnt(%d)" % (9 * RD - 1))
        consume(base, wait, lambda kv, j, base=base: ld(base, kv, j))
        if tl:
            I("s_memrealtime s[98:99]")
            I("s_mov_b32 m0, s57")
            I("s_waitcnt lgkmcnt(0)")
            I("v_writelane_b32 v%d, s98, m0" % (vST - 1))
        I("s_add_u32 s57, s57, 1")
    I("s_branch L_loop")
    for pi in range(NPARK):
        k.label("L_park%d" % pi)
        if pi == 1: stamp(25)
        consume(PK[pi])
        if pi == 1: stamp(26)
        I("s_branch L_park%d_ret" % pi)
    k.label("L_go")
    I("v_mov_b32 v%d, %d" % (vt, L_GO))
    I("v_mov_b32 v%d, 1" % vw)
    I("ds_write_b32 v%d, v%d" % (vt, vw))
    I("s_branch L_go_ret")
    k.label("L_flag")
    I("s_mov_b32 s62, %d" % SPIN)
    I("v_mov_b32 v%d, %d" % (vt, L_FLAG))
    k.label("L_flagspin")
    I("ds_read_b32 v%d, v%d" % (vw, vt))
    I("s_waitcnt lgkmcnt(0)")
    I("v_readfirstlane_b32 s63, v%d" % vw)
    I("s_cmp_eq_u32 s63, 1")
    I("s_cbranch_scc1 L_flag_ret")
    I("s_sleep 8")
    I("s_sub_u32 s62, s62, 1")
    I("s_cbranch_scc0 L_flagspin")
    I("s_branch L_flag_ret")

    k.label("L_fin")
    stamp(3)
    I("v_add_f32_dpp v%d, v%d, v%d row_ror:4 row_mask:0xf bank_mask:0xf" % (vt, vL, vL))
    I("v_mov_b32 v%d, v%d" % (vmn, vM))
    I("v_add_f32_dpp v%d, v%d, v%d row_ror:8 row_mask:0xf bank_mask:0xf" % (vL, vt, vt))
    swap_reduce("v_max_f32", vmn, vt)
    I("v_sub_f32 v%d, v%d, v%d" % (val, vM, vmn))
    I("v_exp_f32 v%d, v%d" % (val, val))
    I("v_mul_f32 v%d, v%d, v%d" % (vL, vL, val))
    for i in range(8):
        I("v_mul_f32 v%d, v%d, v%d" % (vAcc + i, vAcc + i, val))
    swap_reduce("v_add_f32", vL, vt)
    for i in range(4):
        I("v_permlane32_swap_b32 v%d, v%d" % (vAcc + i, vAcc + i + 4))
    for i in range(4):
        I("v_add_f32 v%d, v%d, v%d" % (vAcc + i, vAcc + i, vAcc + i + 4))
    I("v_permlane16_swap_b32 v%d, v%d" % (vAcc + 0, vAcc + 2))
    I("v_permlane16_swap_b32 v%d, v%d" % (vAcc + 1, vAcc + 3))
    I("v_add_f32 v%d, v%d, v%d" % (vAcc + 0, vAcc + 0, vAcc + 2))
    I("v_add_f32 v%d, v%d, v%d" % (vAcc + 1, vAcc + 1, vAcc + 3))
    I("v_and_b32 v%d, 15, v0" % vt)
    I("v_lshrrev_b32 v%d, 4, v0" % vw)
    I("v_lshlrev_b32 v%d, 5, v%d" % (vt, vt))
    I("v_lshl_add_u32 v%d, v%d, 3, v%d" % (vt, vw, vt))
    I("s_lshl_b32 s62, s28, 9")
    I("v_add_u32 v%d, s62, v%d" % (vt, vt))
    I("ds_write_b64 v%d, v[%d:%d] offset:%d" % (vt, vAcc, vAcc + 1, L_PART))
    I("v_mov_b32 v%d, v%d" % (vM, vmn))
    I("s_lshl_b32 s62, s28, 3")
    I("v_mov_b32 v%d, s62" % vt)
    I("s_mov_b64 exec, 1")
    I("ds_write_b64 v%d, v[%d:%d] offset:%d" % (vt, vM, vL, L_MLP))
    I("s_mov_b64 exec, -1")
    I("s_waitcnt lgkmcnt(0)")
    I("s_barrier")
    I("s_cmp_lg_u32 s28, 0")
    I("s_cbranch_scc1 L_sdone")
    Z = P0
    I("v_mov_b32 v20, 0")
    I("v_lshlrev_b32 v21, 3, v0")
    I("ds_read_b128 v[%d:%d], v20 offset:%d" % (Z, Z + 3, L_MLP))
    I("ds_read_b128 v[%d:%d], v20 offset:%d" % (Z + 4, Z + 7, L_MLP + 16))
    for w in range(4):
        I("ds_read_b64 v[%d:%d], v21 offset:%d" % (Z + 8 + 2 * w, Z + 9 + 2 * w, L_PART + 512 * w))
    I("s_lshl_b32 s62, s2, 10")
    I("s_add_u32 s62, s62, %d" % OREC)
    I("s_waitcnt lgkmcnt(4)")
    MM = Z + 16; LL = Z + 17; O0 = Z + 18; O1 = Z + 19
    I("v_max_f32 v%d, v%d, v%d" % (MM, Z, Z + 2))
    I("v_max3_f32 v%d, v%d, v%d, v%d" % (MM, MM, Z + 4, Z + 6))
    for w in range(4):
        I("v_sub_f32 v%d, v%d, v%d" % (Z + 2 * w, Z + 2 * w, MM))
    for w in range(4):
        I("v_exp_f32 v%d, v%d" % (Z + 2 * w, Z + 2 * w))
    I("v_mul_f32 v%d, v%d, v%d" % (LL, Z, Z + 1))
    for w in range(1, 4):
        I("v_fmac_f32 v%d, v%d, v%d" % (LL, Z + 2 * w, Z + 2 * w + 1))
    I("s_waitcnt lgkmcnt(0)")
    I("v_mul_f32 v%d, v%d, v%d" % (O0, Z, Z + 8))
    I("v_mul_f32 v%d, v%d, v%d" % (O1, Z, Z + 9))
    for w in range(1, 4):
        I("v_fmac_f32 v%d, v%d, v%d" % (O0, Z + 2 * w, Z + 8 + 2 * w))
        I("v_fmac_f32 v%d, v%d, v%d" % (O1, Z + 2 * w, Z + 9 + 2 * w))
    I("s_mov_b32 s63, 0x%x" % SENT_CLAMP)
    for r in (MM, LL, O0, O1):
        I("v_min_u32 v%d, s63, v%d" % (r, r))
    I("buffer_store_dwordx2 v[%d:%d], v21, s[36:39], s62 offen sc1" % (O0, O1))
    I("s_mov_b64 exec, 1")
    I("buffer_store_dwordx2 v[%d:%d], v20, s[36:39], s62 offen offset:512 sc1" % (MM, LL))
    I("s_mov_b64 exec, -1")
    stamp(4)
    k.label("L_sdone")
    stamp_flush()
    I("s_endpgm")

    k.label("L_helper")
    if prio: I("s_setprio %d" % prio)
    I("s_sub_u32 s34, s28, 4")
    g = 1; n = 2
    I("v_lshrrev_b32 v%d, 4, v0" % g)
    I("v_and_b32 v%d, 15, v0" % n)
    I("s_mov_b32 s44, s10"); I("s_mov_b32 s45, s11"); I("s_mov_b32 s46, 0x400000"); I("s_mov_b32 s47, 0x20000")
    I("s_mov_b32 s40, s4"); I("s_mov_b32 s41, s5"); I("s_mov_b32 s42, 2048"); I("s_mov_b32 s43, 0x20000")
    I("v_lshrrev_b32 v3, 3, v%d" % n)
    I("v_lshlrev_b32 v4, 2, v3")
    I("v_add_u32 v4, v4, v%d" % g)
    I("v_lshlrev_b32 v5, 16, v4")
    I("v_and_b32 v6, 7, v%d" % n)
    I("v_lshl_add_u32 v5, v6, 3, v5")
    I("s_lshl_b32 s52, s30, 19")
    I("s_lshl_b32 s53, s29, 8")
    I("s_add_u32 s52, s52, s53")
    I("s_lshl_b32 s53, s34, 6")
    I("s_add_u32 s52, s52, s53")
    R = 16
    for j in range(8):
        I("buffer_load_dwordx2 v[%d:%d], v5, s[44:47], s52 offen%s" % (R + 2 * j, R + 2 * j + 1, " nt" if ntq else ""))
        if j < 7: I("s_add_u32 s52, s52, 8192")
    astamp(15)
    XFULL = 48
    I("v_and_b32 v7, 1, v0")
    I("v_lshlrev_b32 v7, 10, v7")
    I("v_lshrrev_b32 v8, 1, v0")
    I("v_lshl_add_u32 v8, v8, 5, v7")
    I("buffer_load_dwordx4 v[%d:%d], v8, s[40:43], 0 offen" % (XFULL, XFULL + 3))
    I("buffer_load_dwordx4 v[%d:%d], v8, s[40:43], 0 offen offset:16" % (XFULL + 4, XFULL + 7))
    XA = 56
    I("v_bfe_u32 v9, v%d, 1, 1" % n)
    I("v_lshlrev_b32 v9, 2, v9")
    I("v_add_u32 v9, v9, v%d" % g)
    I("v_lshl_add_u32 v9, v9, 4, v7")
    I("s_lshl_b32 s53, s30, 7")
    I("buffer_load_dwordx4 v[%d:%d], v9, s[40:43], s53 offen" % (XA, XA + 3))
    I("s_load_dword s35, s[26:27], %d" % EPOCH)
    if b0: I("s_barrier")
    I("v_mov_b32 v14, 0")
    I("v_mov_b32 v15, 0")
    I("v_mov_b32 v12, %d" % L_FLAG)
    I("ds_write_b64 v12, v[14:15]")
    I("s_mov_b32 s64, 0x05040100")
    I("s_mov_b32 s65, 0x07060302")
    astamp(1)
    F = 64
    I("s_waitcnt vmcnt(1)")
    astamp(14)
    for t in range(8):
        I("v_lshlrev_b32 v%d, 16, v%d" % (F + 2 * t, XFULL + t))
        I("v_and_b32 v%d, 0xffff0000, v%d" % (F + 2 * t + 1, XFULL + t))
    def lane_par_reduce(v, t):
        I("v_add_f32_dpp v%d, v%d, v%d row_ror:2 row_mask:0xf bank_mask:0xf" % (t, v, v))
        I("v_add_f32_dpp v%d, v%d, v%d row_ror:4 row_mask:0xf bank_mask:0xf" % (v, t, t))
        I("v_add_f32_dpp v%d, v%d, v%d row_ror:8 row_mask:0xf bank_mask:0xf" % (t, v, v))
        I("v_mov_b32 v%d, v%d" % (v, t))
        swap_reduce("v_add_f32", v, t)
    I("v_add_f32 v12, v%d, v%d" % (F, F + 1))
    I("v_add_f32 v13, v%d, v%d" % (F + 2, F + 3))
    for t in range(4, 16, 2):
        I("v_add_f32 v12, v12, v%d" % (F + t))
        I("v_add_f32 v13, v13, v%d" % (F + t + 1))
    I("v_add_f32 v12, v12, v13")
    lane_par_reduce(12, 13)
    I("v_mul_f32 v12, 0x3b000000, v12")
    I("v_mov_b32 v14, 0")
    I("v_mov_b32 v15, 0")
    for t in range(16):
        I("v_sub_f32 v%d, v%d, v12" % (F + t, F + t))
    for t in range(0, 16, 2):
        I("v_fmac_f32 v14, v%d, v%d" % (F + t, F + t))
        I("v_fmac_f32 v15, v%d, v%d" % (F + t + 1, F + t + 1))
    I("v_add_f32 v14, v14, v15")
    lane_par_reduce(14, 13)
    I("v_mul_f32 v14, 0x3b000000, v14")
    rnd(14, 14)
    I("v_add_f32 v14, 0x3727c5ac, v14")
    rnd(14, 14)
    I("v_sqrt_f32 v14, v14")
    rnd(14, 14)
    I("v_rcp_f32 v14, v14")
    rnd(12, 12)
    A = 60
    I("s_waitcnt vmcnt(0)")
    for t in range(4):
        I("v_lshlrev_b32 v%d, 16, v%d" % (F + 0, XA + t))
        I("v_and_b32 v%d, 0xffff0000, v%d" % (F + 1, XA + t))
        I("v_sub_f32 v%d, v%d, v12" % (F + 0, F + 0))
        I("v_sub_f32 v%d, v%d, v12" % (F + 1, F + 1))
        I("v_cvt_pk_bf16_f32 v%d, v%d, v%d" % (F + 2, F + 0, F + 1))
        I("v_lshlrev_b32 v%d, 16, v%d" % (F + 0, F + 2))
        I("v_and_b32 v%d, 0xffff0000, v%d" % (F + 1, F + 2))
        I("v_mul_f32 v%d, v%d, v14" % (F + 0, F + 0))
        I("v_mul_f32 v%d, v%d, v14" % (F + 1, F + 1))
        I("v_cvt_pk_bf16_f32 v%d, v%d, v%d" % (A + t, F + 0, F + 1))
    Bc = 32
    def perm4(src, dst):
        for c in range(4):
            for jj in range(4):
                I("v_perm_b32 v%d, v%d, v%d, s%d" % (dst + 4 * c + jj, src + 2 * (2 * jj + 1) + (c >> 1), src + 2 * (2 * jj) + (c >> 1), 64 + (c & 1)))
    astamp(16)
    perm4(R, Bc)
    D = 80
    for c in range(4):
        I("v_mfma_f32_16x16x32_bf16 v[%d:%d], v[%d:%d], v[%d:%d], 0" % (D + 4 * c, D + 4 * c + 3, A, A + 3, Bc + 4 * c, Bc + 4 * c + 3))
    I("s_waitcnt lgkmcnt(0)")
    I("s_mul_i32 s35, s35, 0x9E3779B1")
    I("s_add_u32 s35, s35, 0x7F4A7C15")
    G = 96
    for c in range(4):
        I("v_mov_b32 v%d, s35" % (G + 2 * c + 1))
    for c in range(4):
        d = D + 4 * c
        I("v_add_f32_dpp v%d, v%d, v%d row_ror:8 row_mask:0xf bank_mask:0x3" % (G + 2 * c, d + 2, d + 0))
        I("v_add_f32_dpp v%d, v%d, v%d row_ror:8 row_mask:0xf bank_mask:0xc" % (G + 2 * c, d + 1, d + 3))
    I("v_lshlrev_b32 v3, 13, v3")
    I("v_lshl_add_u32 v3, v6, 5, v3")
    I("s_lshl_b32 s52, s29, 4")
    I("s_add_u32 s53, s52, s30")
    I("s_lshl_b32 s53, s53, 10")
    I("s_lshl_b32 s54, s34, 8")
    I("s_add_u32 s53, s53, s54")
    I("s_add_u32 s53, s53, %d" % QG)
    I("s_mov_b64 exec, 0xffff")
    I("buffer_store_dwordx4 v[%d:%d], v3, s[36:39], s53 offen sc1" % (G, G + 3))
    I("buffer_store_dwordx4 v[%d:%d], v3, s[36:39], s53 offen offset:16 sc1" % (G + 4, G + 7))
    I("s_mov_b64 exec, -1")
    astamp(2)
    I("v_lshrrev_b32 v3, 3, v0")
    I("v_lshlrev_b32 v3, 10, v3")
    I("v_and_b32 v4, 7, v0")
    I("v_lshl_add_u32 v3, v4, 5, v3")
    I("s_lshl_b32 s53, s31, 3")
    I("s_add_u32 s53, s53, s52")
    I("s_lshl_b32 s53, s53, 10")
    I("s_add_u32 s53, s53, s54")
    I("s_add_u32 s53, s53, %d" % QG)
    Q2 = 104
    I("s_cmp_lg_u32 s34, 0")
    I("s_cbranch_scc1 L_noinit")
    I("v_lshlrev_b32 v8, 4, v0")
    I("v_mov_b32 v16, -1"); I("v_mov_b32 v17, -1"); I("v_mov_b32 v18, -1"); I("v_mov_b32 v19, -1")
    I("s_lshl_b32 s56, s2, 10")
    I("s_add_u32 s56, s56, %d" % OREC)
    I("buffer_store_dwordx4 v[16:19], v8, s[36:39], s56 offen sc1")
    I("v_lshlrev_b32 v9, 3, v0")
    I("s_lshl_b32 s56, s2, 9")
    I("s_add_u32 s56, s56, %d" % YREC)
    I("buffer_store_dwordx2 v[16:17], v9, s[36:39], s56 offen sc1")
    I("v_lshlrev_b32 v9, 2, v0")
    I("s_lshl_b32 s56, s66, 7")
    I("s_add_u32 s56, s56, %d" % HHBUF)
    I("s_lshl_b32 s57, s68, 7")
    I("s_add_u32 s57, s57, %d" % HBUF)
    I("s_cmp_eq_u32 s67, 2")
    I("s_cselect_b32 s56, s57, s56")
    I("s_cmp_eq_u32 s67, 0")
    I("s_cselect_b32 s56, %d, s56" % WSREC)
    I("s_mov_b64 exec, 0xffffffff")
    I("buffer_store_dword v16, v9, s[36:39], s56 offen sc1")
    I("v_mov_b32 v20, 0")
    I("s_lshl_b32 s57, s33, 8")
    I("s_add_u32 s57, s57, %d" % CNT)
    I("s_cmp_eq_u32 s32, 0")
    I("s_cselect_b32 s56, s57, %d" % WSREC)
    I("s_mov_b64 exec, 1")
    I("buffer_store_dword v20, v9, s[36:39], s56 offen sc1")
    I("s_mov_b64 exec, -1")
    k.label("L_noinit")
    PS = [128 + 8 * i for i in range(NPOLL)]
    def qissue(i):
        I("buffer_load_dwordx4 v[%d:%d], v3, s[36:39], s53 offen sc1" % (PS[i], PS[i] + 3))
        I("buffer_load_dwordx4 v[%d:%d], v3, s[36:39], s53 offen offset:16 sc1" % (PS[i] + 4, PS[i] + 7))
    for i in range(NPOLL):
        sl = SL0 if i == 0 else SL1
        if sl: I("s_sleep %d" % sl)
        qissue(i)
    I("s_mov_b32 s55, %d" % SPIN)
    k.label("L_qpoll")
    for i in range(NPOLL):
        P_ = PS[i]
        I("s_waitcnt vmcnt(%d)" % (2 * (NPOLL - 1)))
        I("v_xor_b32 v5, s35, v%d" % (P_ + 1))
        I("v_xor_b32 v6, s35, v%d" % (P_ + 3))
        I("v_xor_b32 v7, s35, v%d" % (P_ + 5))
        I("v_xor_b32 v8, s35, v%d" % (P_ + 7))
        I("v_or3_b32 v5, v5, v6, v7")
        I("v_or_b32 v5, v5, v8")
        I("v_cmp_ne_u32 vcc, 0, v5")
        I("s_cbranch_vccz L_qok%d" % i)
        qissue(i)
    I("s_sub_u32 s55, s55, 1")
    I("s_cbranch_scc0 L_qpoll")
    for i in range(NPOLL - 1, -1, -1):
        k.label("L_qok%d" % i)
        for t in (0, 2, 4, 6):
            I("v_mov_b32 v%d, v%d" % (Q2 + t, PS[i] + t))
        if i: I("s_branch L_qok")
    k.label("L_qok")
    if prio != prio2: I("s_setprio %d" % prio2)
    I("s_cmp_lg_u32 s34, 0")
    I("s_cbranch_scc1 L_nocnt")
    I("s_mov_b32 s48, s24"); I("s_mov_b32 s49, s25"); I("s_mov_b32 s50, 256"); I("s_mov_b32 s51, 0x20000")
    I("v_mov_b32 v16, 1")
    I("s_mov_b64 exec, 1")
    I("buffer_atomic_add v16, off, s[48:51], 0 sc1")
    I("s_mov_b64 exec, -1")
    k.label("L_nocnt")
    I("v_permlane32_swap_b32 v%d, v%d" % (Q2 + 0, Q2 + 4))
    I("v_permlane32_swap_b32 v%d, v%d" % (Q2 + 2, Q2 + 6))
    I("v_add_f32 v%d, v%d, v%d" % (Q2 + 0, Q2 + 0, Q2 + 4))
    I("v_add_f32 v%d, v%d, v%d" % (Q2 + 2, Q2 + 2, Q2 + 6))
    I("v_permlane16_swap_b32 v%d, v%d" % (Q2 + 0, Q2 + 2))
    I("v_add_f32 v%d, v%d, v%d" % (Q2 + 0, Q2 + 0, Q2 + 2))
    I("v_add_f32_dpp v%d, v%d, v%d row_ror:8 row_mask:0xf bank_mask:0xf" % (Q2 + 1, Q2 + 0, Q2 + 0))
    I("v_cvt_pk_bf16_f32 v%d, v%d, v%d" % (Q2 + 1, Q2 + 1, Q2 + 1))
    I("v_lshl_add_u32 v4, v4, 2, v%d" % g)
    I("s_lshl_b32 s54, s34, 5")
    I("v_add_u32 v4, s54, v4")
    I("v_lshlrev_b32 v4, 1, v4")
    I("ds_write_b16 v4, v%d offset:%d" % (Q2 + 1, L_Q))
    I("s_waitcnt lgkmcnt(0)")
    astamp(3)
    I("s_barrier")

    acollect()
    if warm:
        I("s_lshl_b32 s52, s2, 2")
        I("s_add_u32 s52, s52, s34")
        I("s_lshl_b32 s52, s52, 10")
        I("s_add_u32 s53, s52, 0x100000")
        I("v_lshlrev_b32 v8, 4, v0")
        for mi in range(3):
            I("s_mov_b32 s40, s%d" % (16 + 2 * mi + (0 if mi < 2 else 0))); I("s_mov_b32 s41, s%d" % (17 + 2 * mi)); I("s_mov_b32 s42, %d" % (1376 * 1024)); I("s_mov_b32 s43, 0x20000")
            I("buffer_load_dwordx4 v[100:103], v8, s[40:43], s52 offen%s" % (" nt" if warmnt else ""))
            I("buffer_load_dwordx4 v[100:103], v8, s[40:43], s53 offen%s" % (" nt" if warmnt else ""))
    I("s_cmp_lg_u32 s34, 0")
    I("s_cbranch_scc1 L_noflag")
    I("s_mov_b32 s55, %d" % SPIN)
    I("v_mov_b32 v17, %d" % L_GO)
    k.label("L_gospin")
    I("ds_read_b32 v16, v17")
    I("s_waitcnt lgkmcnt(0)")
    I("v_readfirstlane_b32 s52, v16")
    I("s_cmp_eq_u32 s52, 1")
    I("s_cbranch_scc1 L_gook")
    I("s_sleep 16")
    I("s_sub_u32 s55, s55, 1")
    I("s_cbranch_scc0 L_gospin")
    k.label("L_gook")
    I("s_mov_b32 s55, %d" % SPIN)
    k.label("L_cntpoll")
    I("buffer_load_dword v16, off, s[48:51], 0 sc1")
    I("s_waitcnt vmcnt(0)")
    I("v_readfirstlane_b32 s52, v16")
    I("s_cmp_ge_u32 s52, 256")
    I("s_cbranch_scc1 L_cntok")
    I("s_sleep 64")
    I("s_sub_u32 s55, s55, 1")
    I("s_cbranch_scc0 L_cntpoll")
    k.label("L_cntok")
    I("v_mov_b32 v16, 1")
    I("v_mov_b32 v17, %d" % L_FLAG)
    I("ds_write_b32 v17, v16")
    I("s_waitcnt lgkmcnt(0)")
    k.label("L_noflag")
    stamp(13)

    BW = 112
    I("s_mov_b32 s44, s12"); I("s_mov_b32 s45, s13"); I("s_mov_b32 s46, 0x400000"); I("s_mov_b32 s47, 0x20000")
    I("v_lshlrev_b32 v3, 13, v%d" % g)
    I("v_lshl_add_u32 v3, v%d, 3, v3" % n)
    I("s_lshl_b32 s52, s29, 17")
    I("s_lshl_b32 s53, s34, 15")
    I("s_add_u32 s52, s52, s53")
    I("s_lshl_b32 s53, s30, 7")
    I("s_add_u32 s52, s52, s53")
    I("s_add_u32 s53, s52, 4096")
    for j in range(8):
        I("buffer_load_dwordx2 v[%d:%d], v3, s[44:47], s%d offen offset:%d%s" % (R + 2 * j, R + 2 * j + 1, 52 + (j >> 2), 1024 * (j & 3), " nt" if nto else ""))
    I("v_lshrrev_b32 v4, 3, v%d" % n)
    I("v_lshlrev_b32 v4, 2, v4")
    I("v_add_u32 v4, v4, v%d" % g)
    I("v_and_b32 v5, 7, v%d" % n)
    W = 128
    if warm:
        I("s_cmp_eq_u32 s67, 0")
        I("s_cbranch_scc1 L_wf_ok")
        I("s_mov_b32 s55, %d" % SPIN)
        I("v_mov_b32 v7, %d" % L_FLAG)
        k.label("L_wf_spin")
        I("ds_read_b32 v6, v7")
        I("s_waitcnt lgkmcnt(0)")
        I("v_readfirstlane_b32 s52, v6")
        I("s_cmp_eq_u32 s52, 1")
        I("s_cbranch_scc1 L_wf_ok")
        I("s_sleep 16")
        I("s_sub_u32 s55, s55, 1")
        I("s_cbranch_scc0 L_wf_spin")
        k.label("L_wf_ok")
    I("s_cmp_eq_u32 s67, 1")
    I("s_cbranch_scc1 L_pf_gu")
    I("s_cmp_eq_u32 s67, 2")
    I("s_cbranch_scc1 L_pf_down")
    I("s_waitcnt vmcnt(0)")
    perm4(R, BW)
    I("s_branch L_pf_done")

    k.label("L_pf_gu")
    I("s_mov_b32 s52, 2752*8")
    I("v_mul_lo_u32 v6, v4, s52")
    I("v_lshl_add_u32 v6, v5, 3, v6")
    for mat in range(2):
        I("s_mov_b32 s40, s%d" % (16 + 2 * mat)); I("s_mov_b32 s41, s%d" % (17 + 2 * mat)); I("s_mov_b32 s42, %d" % (512 * 2752)); I("s_mov_b32 s43, 0x20000")
        for ds in range(2):
            I("s_mul_i32 s52, s34, %d" % (128 * 2752))
            I("s_lshl_b32 s53, s66, 6")
            I("s_add_u32 s52, s52, s53")
            if ds: I("s_add_u32 s52, s52, %d" % (64 * 2752))
            raw = W + 16 * (ds * 2 + mat + 1)
            for jj in range(8):
                if not nopref: I("buffer_load_dwordx2 v[%d:%d], v6, s[40:43], s52 offen%s" % (raw + 2 * jj, raw + 2 * jj + 1, " nt" if ntf else ""))
                if jj < 7: I("s_add_u32 s52, s52, 2752")
    I("s_waitcnt vmcnt(%d)" % (0 if nopref else 32))
    perm4(R, BW)
    I("s_waitcnt vmcnt(0)")
    for i in range(4): perm4(W + 16 * (i + 1), W + 16 * i)
    for t in range(4): I("v_mov_b32 v%d, 0x3f803f80" % (16 + t))
    CS = 20
    for mat in range(2):
        for c in range(4):
            d = 32 + 4 * (mat * 4 + c)
            b0_ = W + 16 * mat + 4 * c
            b1_ = W + 16 * (2 + mat) + 4 * c
            I("v_mfma_f32_16x16x32_bf16 v[%d:%d], v[16:19], v[%d:%d], 0" % (d, d + 3, b0_, b0_ + 3))
            I("v_mfma_f32_16x16x32_bf16 v[%d:%d], v[16:19], v[%d:%d], v[%d:%d]" % (d, d + 3, b1_, b1_ + 3, d, d + 3))
    for t in range(8):
        d = 32 + 4 * t
        I("v_add_f32_dpp v%d, v%d, v%d row_ror:8 row_mask:0xf bank_mask:0xf" % (CS + t, d, d))
    I("s_lshl_b32 s52, s34, 8")
    I("v_lshlrev_b32 v6, 4, v5")
    I("v_add_u32 v6, s52, v6")
    I("s_mov_b64 exec, 0xff")
    I("ds_write_b128 v6, v[%d:%d] offset:%d" % (CS, CS + 3, L_CS))
    I("ds_write_b128 v6, v[%d:%d] offset:%d" % (CS + 4, CS + 7, L_CS + 128))
    I("s_mov_b64 exec, -1")
    I("s_branch L_pf_done")
    k.label("L_pf_down")
    I("v_lshlrev_b32 v6, 13, v4")
    I("v_lshl_add_u32 v6, v5, 3, v6")
    I("s_mov_b32 s40, s20"); I("s_mov_b32 s41, s21"); I("s_mov_b32 s42, %d" % (1376 * 1024)); I("s_mov_b32 s43, 0x20000")
    for i in range(6):
        I("s_lshl_b32 s52, s34, 16")
        I("s_lshl_b32 s53, s68, 6")
        I("s_add_u32 s52, s52, s53")
        if i: I("s_add_u32 s52, s52, %d" % (i * 4 * 65536))
        I("s_add_u32 s53, s52, 4096")
        raw = W + 16 * (i + 1)
        for jj in range(8):
            if not nopref: I("buffer_load_dwordx2 v[%d:%d], v6, s[40:43], s%d offen offset:%d%s" % (raw + 2 * jj, raw + 2 * jj + 1, 52 + (jj >> 2), 1024 * (jj & 3), " nt" if ntf else ""))
    I("s_mov_b32 s44, s4"); I("s_mov_b32 s45, s5"); I("s_mov_b32 s46, 2048"); I("s_mov_b32 s47, 0x20000")
    I("v_and_b32 v7, 1, v0")
    I("v_lshl_add_u32 v7, v7, 2, v%d" % g)
    I("v_lshlrev_b32 v7, 1, v7")
    I("v_bfe_u32 v8, v0, 1, 1")
    I("v_lshl_add_u32 v9, v8, 10, v7")
    I("s_lshl_b32 s52, s68, 6")
    I("s_lshl_b32 s53, s34, 4")
    I("s_add_u32 s52, s52, s53")
    I("buffer_load_ushort v15, v9, s[44:47], s52 offen")
    I("s_waitcnt vmcnt(%d)" % (1 if nopref else 49))
    perm4(R, BW)
    I("s_waitcnt vmcnt(0)")
    for i in range(6): perm4(W + 16 * (i + 1), W + 16 * i)
    I("v_lshlrev_b32 v15, 16, v15")
    k.label("L_pf_done")
    stamp(4)

    I("v_bfe_u32 v6, v%d, 1, 1" % n)
    I("v_and_b32 v7, 1, v%d" % n)
    I("v_lshl_or_b32 v6, v7, 1, v6")
    I("v_and_b32 v7, 4, v%d" % n)
    I("v_or_b32 v6, v6, v7")
    I("v_lshlrev_b32 v6, 10, v6")
    I("v_lshl_add_u32 v7, v%d, 5, v6" % g)
    I("s_lshl_b32 s52, s29, 13")
    I("s_add_u32 s52, s52, %d" % OREC)
    I("s_lshl_b32 s53, s34, 7")
    I("s_add_u32 s53, s53, s52")
    I("s_mov_b32 s55, %d" % SPIN)
    I("s_waitcnt lgkmcnt(0)")
    I("s_barrier")
    stamp(5)
    O = 16
    k.label("L_opoll")
    I("buffer_load_dwordx4 v[%d:%d], v7, s[36:39], s53 offen sc1" % (O, O + 3))
    I("buffer_load_dwordx4 v[%d:%d], v7, s[36:39], s53 offen offset:16 sc1" % (O + 4, O + 7))
    I("buffer_load_dwordx2 v[%d:%d], v6, s[36:39], s52 offen offset:512 sc1" % (O + 8, O + 9))
    I("s_waitcnt vmcnt(0)")
    I("v_max3_u32 v12, v%d, v%d, v%d" % (O, O + 1, O + 2))
    I("v_max3_u32 v13, v%d, v%d, v%d" % (O + 3, O + 4, O + 5))
    I("v_max3_u32 v12, v12, v%d, v%d" % (O + 6, O + 7))
    I("v_max3_u32 v13, v13, v%d, v%d" % (O + 8, O + 9))
    I("v_max_u32 v12, v12, v13")
    I("v_cmp_eq_u32 vcc, -1, v12")
    I("s_sub_u32 s55, s55, 1")
    I("s_cbranch_scc1 L_opoll_out")
    I("s_mov_b64 exec, vcc")
    I("s_cbranch_execnz L_opoll")
    k.label("L_opoll_out")
    I("s_mov_b64 exec, -1")
    stamp(6)
    m_, l_ = O + 8, O + 9
    I("v_max_f32_dpp v12, v%d, v%d quad_perm:[2,3,0,1] row_mask:0xf bank_mask:0xf" % (m_, m_))
    I("v_max_f32_dpp v13, v12, v12 row_ror:4 row_mask:0xf bank_mask:0xf")
    I("v_sub_f32 v12, v%d, v13" % m_)
    I("v_exp_f32 v12, v12")
    I("v_mul_f32 v13, v12, v%d" % l_)
    I("v_add_f32_dpp v14, v13, v13 quad_perm:[2,3,0,1] row_mask:0xf bank_mask:0xf")
    I("v_add_f32_dpp v13, v14, v14 row_ror:4 row_mask:0xf bank_mask:0xf")
    I("v_rcp_f32 v13, v13")
    I("v_mul_f32 v12, v12, v13")
    for t in range(8): I("v_mul_f32 v%d, v%d, v12" % (O + t, O + t))
    for t in range(8): I("v_add_f32_dpp v%d, v%d, v%d quad_perm:[2,3,0,1] row_mask:0xf bank_mask:0xf" % (32 + t, O + t, O + t))
    for t in range(8): I("v_add_f32_dpp v%d, v%d, v%d row_ror:4 row_mask:0xf bank_mask:0xf" % (O + t, 32 + t, 32 + t))
    for t in range(4): I("v_cvt_pk_bf16_f32 v%d, v%d, v%d" % (28 + t, O + 2 * t, O + 2 * t + 1))
    D = 32
    for c in range(4):
        I("v_mfma_f32_16x16x32_bf16 v[%d:%d], v[28:31], v[%d:%d], 0" % (D + 4 * c, D + 4 * c + 3, BW + 4 * c, BW + 4 * c + 3))
    I("s_lshl_b32 s52, s34, 9")
    I("s_add_u32 s52, s52, %d" % L_YP)
    I("v_lshlrev_b32 v13, 4, v%d" % n)
    I("v_add_u32 v13, s52, v13")
    I("s_mov_b64 exec, 0xffff")
    for bb in range(2):
        I("ds_write2_b32 v13, v%d, v%d offset0:%d offset1:%d" % (D + bb, D + 4 + bb, 64 * bb, 64 * bb + 1))
        I("ds_write2_b32 v13, v%d, v%d offset0:%d offset1:%d" % (D + 8 + bb, D + 12 + bb, 64 * bb + 2, 64 * bb + 3))
    I("s_mov_b64 exec, -1")
    I("s_waitcnt lgkmcnt(0)")
    I("s_barrier")
    stamp(7)
    I("s_cmp_lg_u32 s34, 0")
    I("s_cbranch_scc1 L_noY")
    I("v_lshlrev_b32 v12, 4, v0")
    I("s_mov_b64 exec, 0xffffffff")
    for w in range(4):
        I("ds_read_b128 v[%d:%d], v12 offset:%d" % (16 + 4 * w, 19 + 4 * w, L_YP + 512 * w))
    I("s_lshl_b32 s52, s2, 9")
    I("s_add_u32 s52, s52, %d" % YREC)
    I("s_mov_b32 s63, 0x%x" % SENT_CLAMP)
    I("s_waitcnt lgkmcnt(2)")
    for t in range(4): I("v_add_f32 v%d, v%d, v%d" % (16 + t, 16 + t, 20 + t))
    I("s_waitcnt lgkmcnt(0)")
    for t in range(4): I("v_add_f32 v%d, v%d, v%d" % (24 + t, 24 + t, 28 + t))
    for t in range(4): I("v_add_f32 v%d, v%d, v%d" % (16 + t, 16 + t, 24 + t))
    for t in range(4): I("v_min_u32 v%d, s63, v%d" % (16 + t, 16 + t))
    I("buffer_store_dwordx4 v[16:19], v12, s[36:39], s52 offen sc1")
    I("s_mov_b64 exec, -1")
    stamp(8)
    k.label("L_noY")
    I("s_cmp_eq_u32 s67, 1")
    I("s_cbranch_scc1 L_gu")
    I("s_cmp_eq_u32 s67, 2")
    I("s_cbranch_scc1 L_down")
    I("s_branch L_hend")

    def a_addr(dst):
        I("v_bfe_u32 v12, v%d, 1, 1" % n)
        I("v_lshlrev_b32 v12, 2, v12")
        I("v_add_u32 v12, v12, v%d" % g)
        I("v_lshlrev_b32 v12, 5, v12")
        I("v_and_b32 v13, 1, v%d" % n)
        I("v_lshl_add_u32 v%d, v13, 4, v12" % dst)
    def poll(name, loads, regs, execmask):
        I("s_mov_b32 s55, %d" % SPIN)
        if execmask is not None: I("s_mov_b64 exec, %s" % execmask)
        k.label(name)
        for l in loads: I(l)
        I("s_waitcnt vmcnt(0)")
        regs = list(regs)
        acc = [12, 13]
        first = [True, True]
        idx = 0
        while regs:
            a_ = acc[idx & 1]
            if first[idx & 1]:
                if len(regs) >= 3:
                    I("v_max3_u32 v%d, v%d, v%d, v%d" % (a_, regs[0], regs[1], regs[2])); regs = regs[3:]
                    first[idx & 1] = False
                else:
                    a_ = acc[0]
                    I("v_max_u32 v%d, v%d, v%d" % (a_, a_, regs[0])); regs = regs[1:]
            else:
                if len(regs) >= 2:
                    I("v_max3_u32 v%d, v%d, v%d, v%d" % (a_, a_, regs[0], regs[1])); regs = regs[2:]
                else:
                    I("v_max_u32 v%d, v%d, v%d" % (a_, a_, regs[0])); regs = regs[1:]
            idx += 1
        if not first[1]: I("v_max_u32 v12, v12, v13")
        I("v_cmp_eq_u32 vcc, -1, v12")
        I("s_sub_u32 s55, s55, 1")
        I("s_cbranch_scc1 %s_out" % name)
        I("s_mov_b64 exec, vcc")
        I("s_cbranch_execnz %s" % name)
        k.label(name + "_out")
        I("s_mov_b64 exec, -1")
    AMASK = "s[70:71]"

    k.label("L_gu")
    AD = 64
    a_addr(14)
    I("s_mov_b32 s70, 0x000f000f"); I("s_mov_b32 s71, 0x000f000f")
    I("v_cmp_eq_u32 vcc, 4, v%d" % n)
    I("v_mov_b32 v15, 0x3f803f80")
    for t in range(8): I("v_cndmask_b32 v%d, 0, v15, vcc" % (AD + t))
    I("s_lshl_b32 s52, s34, 9")
    I("s_add_u32 s52, s52, %d" % HBUF)
    CSUM = 72
    I("v_and_b32 v6, 31, v0")
    I("v_lshlrev_b32 v6, 2, v6")
    I("v_add_u32 v6, %d, v6" % L_CS)
    for w in range(4):
        I("ds_read2_b32 v[%d:%d], v6 offset0:%d offset1:%d" % (32 + 2 * w, 33 + 2 * w, 64 * w, 64 * w + 32))
    I("v_and_b32 v7, 1, v0")
    I("v_lshlrev_b32 v7, 4, v7")
    I("v_bfe_u32 v8, v0, 1, 1")
    I("v_lshl_add_u32 v7, v8, 2, v7")
    I("v_bfe_u32 v8, v0, 4, 1")
    I("v_lshl_add_u32 v7, v8, 3, v7")
    I("s_lshl_b32 s53, s34, 5")
    I("v_add_u32 v7, s53, v7")
    I("v_lshlrev_b32 v8, 4, v%d" % n)
    I("s_lshl_b32 s53, s34, 9")
    I("v_add_u32 v8, s53, v8")
    I("s_waitcnt lgkmcnt(0)")
    for t in range(2):
        I("v_add_f32 v%d, v%d, v%d" % (32 + t, 32 + t, 34 + t))
        I("v_add_f32 v%d, v%d, v%d" % (36 + t, 36 + t, 38 + t))
        I("v_add_f32 v%d, v%d, v%d" % (CSUM + t, 32 + t, 36 + t))
    I("v_lshlrev_b32 v9, 2, v0")
    I("v_add_u32 v9, %d, v9" % L_GUD)
    I("v_lshrrev_b32 v10, 5, v0")
    I("v_lshlrev_b32 v10, 4, v10")
    I("v_bfe_u32 v11, v0, 3, 2")
    I("v_lshl_add_u32 v11, v11, 5, v10")
    I("v_and_b32 v3, 7, v0")
    I("v_lshl_add_u32 v11, v3, 1, v11")
    poll("L_hpoll",
         ["buffer_load_dwordx4 v[%d:%d], v14, s[36:39], s52 offen offset:%d sc1" % (AD + 4 * ds, AD + 4 * ds + 3, 256 * ds) for ds in range(2)],
         range(AD, AD + 8), AMASK)
    stamp(9)
    DG = 32
    S = 92
    for ds in range(2):
        I("v_mfma_f32_16x16x32_bf16 v[%d:%d], v[%d:%d], v[%d:%d], %s" % (S, S + 3, AD + 4 * ds, AD + 4 * ds + 3, AD + 4 * ds, AD + 4 * ds + 3, "0" if ds == 0 else "v[%d:%d]" % (S, S + 3)))
        for mat in range(2):
            for c in range(4):
                d = DG + 4 * (mat * 4 + c)
                bb = W + 16 * (ds * 2 + mat) + 4 * c
                I("v_mfma_f32_16x16x32_bf16 v[%d:%d], v[%d:%d], v[%d:%d], %s" % (d, d + 3, AD + 4 * ds, AD + 4 * ds + 3, bb, bb + 3, "0" if ds == 0 else "v[%d:%d]" % (d, d + 3)))
    I("s_mov_b64 s[72:73], 2"); I("s_mov_b64 s[74:75], 4"); I("s_mov_b64 s[76:77], 8")
    I("v_cndmask_b32 v76, v%d, v%d, s[72:73]" % (S, S + 1))
    I("v_cndmask_b32 v76, v76, v%d, s[74:75]" % (S + 2))
    I("v_cndmask_b32 v76, v76, v%d, s[76:77]" % (S + 3))
    for t in range(8):
        d = DG + 4 * t
        I("v_add_f32_dpp v%d, v%d, v%d row_ror:8 row_mask:0xf bank_mask:0x3" % (80 + t, d + 2, d + 0))
        I("v_add_f32_dpp v%d, v%d, v%d row_ror:8 row_mask:0xf bank_mask:0xc" % (80 + t, d + 1, d + 3))
    I("s_mov_b64 exec, 0x000f000f")
    I("ds_write_b32 v7, v76 offset:%d" % L_STAT)
    I("s_mov_b64 exec, 0xffff")
    I("ds_write_b128 v8, v[80:83] offset:%d" % L_GUD)
    I("ds_write_b128 v8, v[84:87] offset:%d" % (L_GUD + 256))
    I("s_mov_b64 exec, -1")
    I("s_waitcnt lgkmcnt(0)")
    I("s_barrier")
    stamp(10)
    I("s_cmp_lg_u32 s34, 0")
    I("s_cbranch_scc1 L_hend")
    for w in range(4):
        I("ds_read_b128 v[%d:%d], v10 offset:%d" % (48 + 4 * w, 51 + 4 * w, L_STAT + 32 * w))
    for w in range(4):
        I("ds_read2st64_b32 v[%d:%d], v9 offset0:%d offset1:%d" % (32 + 2 * w, 33 + 2 * w, 2 * w, 2 * w + 1))
    I("s_lshl_b32 s52, s66, 7")
    I("s_add_u32 s52, s52, %d" % HHBUF)
    I("s_waitcnt lgkmcnt(4)")
    for w in range(4):
        I("v_add_f32 v%d, v%d, v%d" % (48 + 4 * w, 48 + 4 * w, 49 + 4 * w))
        I("v_add_f32 v%d, v%d, v%d" % (50 + 4 * w, 50 + 4 * w, 51 + 4 * w))
    I("v_add_f32 v48, v48, v52"); I("v_add_f32 v50, v50, v54")
    I("v_add_f32 v56, v56, v60"); I("v_add_f32 v58, v58, v62")
    I("v_add_f32 v48, v48, v56"); I("v_add_f32 v50, v50, v58")
    I("v_mul_f32 v50, 0x3b000000, v50")
    I("v_mul_f32 v48, 0x3b000000, v48")
    I("v_fma_f32 v48, -v50, v50, v48")
    I("v_max_f32 v48, 0, v48")
    rnd(48, 48)
    I("v_add_f32 v48, 0x3727c5ac, v48")
    rnd(48, 48)
    I("v_sqrt_f32 v48, v48")
    rnd(48, 48)
    I("v_rcp_f32 v48, v48")
    rnd(50, 50)
    I("s_waitcnt lgkmcnt(0)")
    for t in range(2):
        I("v_add_f32 v%d, v%d, v%d" % (32 + t, 32 + t, 34 + t))
        I("v_add_f32 v%d, v%d, v%d" % (36 + t, 36 + t, 38 + t))
    for t in range(2):
        I("v_add_f32 v%d, v%d, v%d" % (32 + t, 32 + t, 36 + t))
    for t in range(2):
        I("v_fma_f32 v%d, -v50, v%d, v%d" % (32 + t, CSUM + t, 32 + t))
    for t in range(2):
        I("v_mul_f32 v%d, v%d, v48" % (32 + t, 32 + t))
    I("v_cvt_pk_bf16_f32 v36, v32, v33")
    I("v_lshlrev_b32 v32, 16, v36")
    I("v_and_b32 v33, 0xffff0000, v36")
    I("v_max_f32 v32, 0, v32")
    I("v_mul_f32 v32, v32, v33")
    I("v_mov_b32_dpp v33, v32 quad_perm:[1,0,3,2] row_mask:0xf bank_mask:0xf")
    I("v_cvt_pk_bf16_f32 v36, v32, v33")
    I("s_mov_b32 s63, 0x%x" % SENT_CLAMP)
    I("v_min_u32 v36, s63, v36")
    I("s_mov_b32 s70, 0x55555555"); I("s_mov_b32 s71, 0x55555555")
    I("s_mov_b64 exec, s[70:71]")
    I("buffer_store_dword v36, v11, s[36:39], s52 offen sc1")
    I("s_mov_b64 exec, -1")
    I("s_branch L_hend")

    k.label("L_down")
    I("v_lshrrev_b32 v5, 2, v0")
    I("v_lshlrev_b32 v5, 12, v5")
    I("v_bfe_u32 v6, v0, 1, 1")
    I("v_lshl_add_u32 v5, v6, 8, v5")
    I("v_and_b32 v7, 1, v0")
    I("v_lshl_add_u32 v5, v7, 4, v5")
    I("s_lshr_b32 s52, s68, 1")
    I("s_lshl_b32 s52, s52, 9")
    I("s_and_b32 s53, s68, 1")
    I("s_lshl_b32 s53, s53, 7")
    I("s_add_u32 s52, s52, s53")
    I("s_lshl_b32 s53, s34, 5")
    I("s_add_u32 s52, s52, s53")
    I("s_add_u32 s52, s52, %d" % YREC)
    I("s_add_u32 s56, s52, 65536")
    I("v_lshlrev_b32 v9, 4, v6")
    I("v_lshl_add_u32 v9, v7, 3, v9")
    I("v_lshrrev_b32 v10, 5, v0")
    I("v_lshl_add_u32 v9, v10, 2, v9")
    I("v_lshlrev_b32 v11, 6, v6")
    I("v_lshl_add_u32 v11, v7, 3, v11")
    I("v_lshl_add_u32 v11, v10, 2, v11")
    I("s_lshl_b32 s53, s34, 4")
    I("v_add_u32 v11, s53, v11")
    Y = 16
    poll("L_ypoll",
         ["buffer_load_dwordx4 v[%d:%d], v5, s[36:39], s%d offen sc1" % (Y + 4 * t, Y + 4 * t + 3, 52 if t == 0 else 56) for t in range(2)],
         range(Y, Y + 8), None)
    for t in range(4):
        I("v_add_f32 v%d, v%d, v%d" % (Y + t, Y + t, Y + 4 + t))
    I("v_permlane32_swap_b32 v%d, v%d" % (Y + 0, Y + 2))
    I("v_permlane32_swap_b32 v%d, v%d" % (Y + 1, Y + 3))
    I("v_add_f32 v%d, v%d, v%d" % (Y + 0, Y + 0, Y + 2))
    I("v_add_f32 v%d, v%d, v%d" % (Y + 1, Y + 1, Y + 3))
    I("v_permlane16_swap_b32 v%d, v%d" % (Y + 0, Y + 1))
    I("v_add_f32 v%d, v%d, v%d" % (Y + 0, Y + 0, Y + 1))
    I("v_add_f32_dpp v20, v%d, v%d row_ror:4 row_mask:0xf bank_mask:0xf" % (Y + 0, Y + 0))
    I("v_add_f32_dpp v21, v20, v20 row_ror:8 row_mask:0xf bank_mask:0xf")
    rnd(21, 21)
    I("v_add_f32 v21, v21, v15")
    I("v_mov_b32 v20, v21")
    I("v_permlane16_swap_b32 v20, v21")
    I("v_cvt_pk_bf16_f32 v22, v20, v21")
    I("s_mov_b32 s63, 0x%x" % SENT_CLAMP)
    I("v_min_u32 v22, s63, v22")
    I("s_lshl_b32 s52, s68, 2")
    I("s_add_u32 s52, s52, s34")
    I("s_lshl_b32 s52, s52, 5")
    I("s_add_u32 s52, s52, %d" % HBUF)
    I("s_mov_b32 s70, 0xf"); I("s_mov_b32 s71, 0xf")
    I("s_mov_b64 exec, s[70:71]")
    I("buffer_store_dword v22, v9, s[36:39], s52 offen sc1")
    I("ds_write_b32 v11, v22 offset:%d" % L_HB)
    I("s_mov_b64 exec, -1")
    stamp(17)
    AD = 64
    a_addr(14)
    I("s_mov_b32 s70, 0x000f000f"); I("s_mov_b32 s71, 0x000f000f")
    I("s_add_u32 s40, s26, %d" % HHBUF)
    I("s_addc_u32 s41, s27, 0")
    I("s_mov_b32 s42, 5504")
    I("s_mov_b32 s43, 0x20000")
    for t in range(24): I("v_mov_b32 v%d, 0" % (AD + t))
    for i in range(6):
        I("s_add_u32 s%d, s34, %d" % (56 + i, 4 * i))
        I("s_lshl_b32 s%d, s%d, 8" % (56 + i, 56 + i))
    I("v_lshlrev_b32 v8, 4, v%d" % n)
    I("s_lshl_b32 s53, s34, 8")
    I("v_add_u32 v8, s53, v8")
    I("v_lshlrev_b32 v9, 2, v0")
    I("v_add_u32 v9, %d, v9" % L_DP)
    I("v_lshlrev_b32 v10, 1, v0")
    I("v_lshrrev_b32 v11, 5, v0")
    I("v_lshlrev_b32 v11, 10, v11")
    I("v_and_b32 v3, 31, v0")
    I("v_lshl_add_u32 v11, v3, 1, v11")
    I("s_mov_b32 s44, s22"); I("s_mov_b32 s45, s23"); I("s_mov_b32 s46, 2048"); I("s_mov_b32 s47, 0x20000")
    poll("L_hhpoll",
         ["buffer_load_dwordx4 v[%d:%d], v14, s[40:43], s%d offen sc1" % (AD + 4 * i, AD + 4 * i + 3, 56 + i) for i in range(6)],
         range(AD, AD + 24), AMASK)
    stamp(9)
    for i in range(6):
        for c in range(4):
            d = 32 + 4 * c
            bb = W + 16 * i + 4 * c
            I("v_mfma_f32_16x16x32_bf16 v[%d:%d], v[%d:%d], v[%d:%d], %s" % (d, d + 3, AD + 4 * i, AD + 4 * i + 3, bb, bb + 3, "0" if i == 0 else "v[%d:%d]" % (d, d + 3)))
    for c in range(4):
        d = 32 + 4 * c
        I("v_add_f32_dpp v%d, v%d, v%d row_ror:8 row_mask:0xf bank_mask:0x3" % (48 + c, d + 2, d + 0))
        I("v_add_f32_dpp v%d, v%d, v%d row_ror:8 row_mask:0xf bank_mask:0xc" % (48 + c, d + 1, d + 3))
    I("s_mov_b64 exec, 0xffff")
    I("ds_write_b128 v8, v[48:51] offset:%d" % L_DP)
    I("s_mov_b64 exec, -1")
    I("s_waitcnt lgkmcnt(0)")
    I("s_barrier")
    stamp(10)
    I("s_cmp_lg_u32 s34, 0")
    I("s_cbranch_scc1 L_hend")
    for w in range(2):
        I("ds_read2st64_b32 v[%d:%d], v9 offset0:%d offset1:%d" % (32 + 2 * w, 33 + 2 * w, 2 * w, 2 * w + 1))
    I("ds_read_u16 v40, v10 offset:%d" % L_HB)
    I("s_lshl_b32 s52, s68, 6")
    I("s_waitcnt lgkmcnt(0)")
    I("v_add_f32 v32, v32, v33")
    I("v_add_f32 v34, v34, v35")
    I("v_add_f32 v32, v32, v34")
    rnd(32, 32)
    I("v_lshlrev_b32 v35, 16, v40")
    I("v_add_f32 v32, v32, v35")
    I("v_mov_b32_dpp v33, v32 quad_perm:[1,0,3,2] row_mask:0xf bank_mask:0xf")
    I("v_cvt_pk_bf16_f32 v34, v32, v33")
    I("s_mov_b32 s70, 0x55555555"); I("s_mov_b32 s71, 0x55555555")
    I("s_mov_b64 exec, s[70:71]")
    I("buffer_store_dword v34, v11, s[44:47], s52 offen")
    I("s_cmp_lg_u32 s68, 0")
    I("s_cbranch_scc1 L_noepoch")
    I("v_mov_b32 v35, s35")
    I("s_mov_b64 exec, 1")
    I("buffer_store_dword v35, off, s[36:39], 0 offset:%d sc1" % EPOCH)
    k.label("L_noepoch")
    I("s_mov_b64 exec, -1")
    k.label("L_hend")
    stamp(11)
    stamp_flush()
    k.label("L_end")
    I("s_endpgm")

    body = k.finish()
    for p in k.problems: print("HAZARD-EDGE:", p)
    nv = 256
    out = [HEADER.rstrip()]
    out.append("; Override launch geometry by editing the next line (default: block=256,")
    out.append("; @launch grid=(256,1,1) block=(512,1,1) lds=%d" % LDS_BYTES)
    out.append('.amdgcn_target "amdgcn-amd-amdhsa--gfx950"')
    out.append(".text")
    out.append(".globl %s" % KNAME)
    out.append(".p2align 8")
    out.append(".type %s,@function" % KNAME)
    out.append("%s:" % KNAME)
    for ln in body:
        out.append(ln if ln.endswith(":") else "    " + ln)
    out.append('.section .rodata,"a"')
    out.append(".p2align 6")
    out.append(".amdhsa_kernel %s" % KNAME)
    out.append("  .amdhsa_next_free_vgpr %d" % nv)
    out.append("  .amdhsa_next_free_sgpr 102")
    out.append("  .amdhsa_accum_offset %d" % nv)
    out.append("  .amdhsa_group_segment_fixed_size 0")
    out.append("  .amdhsa_kernarg_size 96")
    out.append("  .amdhsa_user_sgpr_count 2")
    out.append("  .amdhsa_user_sgpr_kernarg_segment_ptr 1")
    out.append("  .amdhsa_system_sgpr_workgroup_id_x 1")
    out.append(".end_amdhsa_kernel")
    open(path, "w").write("\n".join(out) + "\n")

if __name__ == "__main__":
    import argparse
    ap = argparse.ArgumentParser()
    ap.add_argument("out")
    ap.add_argument("--stamps", action="store_true")
    ap.add_argument("--NS", type=int, default=26)
    ap.add_argument("--NPARK", type=int, default=2)
    ap.add_argument("--nopref", action="store_true")
    ap.add_argument("--nocomp", action="store_true")
    ap.add_argument("--prio", type=int, default=0)
    ap.add_argument("--prio2", type=int, default=0)
    ap.add_argument("--xf", type=int, default=None)
    ap.add_argument("--wqcap", type=int, default=32)
    ap.add_argument("--XG", type=int, default=6)
    ap.add_argument("--warm", action="store_true")
    ap.add_argument("--contig", action="store_true")
    ap.add_argument("--SL0", type=int, default=22)
    ap.add_argument("--SL1", type=int, default=22)
    ap.add_argument("--NPOLL", type=int, default=3)
    ap.add_argument("--warmnt", action="store_true")
    ap.add_argument("--CAP", type=int, default=34)
    ap.add_argument("--b0", action="store_true")
    ap.add_argument("--rot", type=int, default=0)
    ap.add_argument("--tl", action="store_true")
    ap.add_argument("--RD", type=int, default=2)
    ap.add_argument("--xp", default=None)
    ap.add_argument("--ntq", action="store_true")
    ap.add_argument("--nto", action="store_true")
    ap.add_argument("--ntf", action="store_true")
    a = ap.parse_args()
    gen(a.out, contig=a.contig, NS=a.NS, CAP=a.CAP, stamps=a.stamps, b0=a.b0, NPARK=a.NPARK, nopref=a.nopref, nocomp=a.nocomp, prio=a.prio, prio2=a.prio2, xf=a.xf, wqcap=a.wqcap, XG=a.XG, warm=a.warm, warmnt=a.warmnt, SL0=a.SL0, SL1=a.SL1, NPOLL=a.NPOLL, rot=a.rot, tl=a.tl, RD=a.RD, ntq=a.ntq, nto=a.nto, ntf=a.ntf, xp=a.xp)
```

```python
import sys
from asmlib import K

KNAME = "sequential_preLN__gqa_block_cached__glu_gated_reglu__decode_kernel"
REF = "sequential_preLN__gqa_block_cached__glu_gated_reglu__decode.s.ref"
HEADER = open(REF).read().split("; Override")[0]

EPOCH = 0
CNT = 0x1000
QG = 0x10000
OREC = 0x100000
YREC = 0x140000
HBUF = 0x160000
HHBUF = 0x161000
DBG = 0x200000
WSREC = 0x300000
L_Q = 0x000
L_FLAG = 0x100
L_GO = 0x104
L_MLP = 0x120
L_PART = 0x200
L_YP = 0xA00
L_GUD = 0x1200
L_STAT = 0x1A00
L_CS = 0x1B00
L_DP = 0x1200
L_HB = 0x1F00
LDS_BYTES = 0x2000

SENT_CLAMP = 0xFFFFFFFE
SPIN = 1 << 14

def gen(path, contig=False, NS=26, CAP=34, stamps=False, NPARK=2, XP=(2, 6, 10, 14), b0=False, nopref=False, nocomp=False, prio=0, prio2=0, xf=None, wqcap=32, XG=6, warm=False, warmnt=False, SL0=22, SL1=22, NPOLL=3, rot=0, tl=False, RD=2, ntq=False, nto=False, ntf=False, xp=None, dbgst=False):
    NFILL = NPARK + RD
    XF = ((NS - NFILL - RD - 2) // RD) * RD
    if RD != 2: XP = tuple(RD * (1 + 2 * i) if RD == 2 else RD * (1 + i) for i in range(4))
    assert XG % RD == 0
    if xf is not None: XF = xf
    if xp is not None: XP = tuple(int(x) for x in xp.split(','))
    assert NPARK == 0 or max(XP[:NPARK]) < NS - NPARK - RD
    assert XF >= 0
    k = K()
    I = k.I
    vST = 250
    nst = [0]
    def stamp(idx):
        if not stamps: return
        I("s_memrealtime s[98:99]")
        I("s_waitcnt lgkmcnt(0)")
        I("v_writelane_b32 v%d, s98, %d" % (vST, idx))
    apend = []
    def astamp(idx):
        if not stamps: return
        r = 78 + 2 * len(apend)
        assert r <= 96
        I("s_memrealtime s[%d:%d]" % (r, r + 1))
        apend.append((idx, r))
    def acollect(keep=0):
        if not stamps: return
        I("s_waitcnt lgkmcnt(0)")
        for idx, r in apend: I("v_writelane_b32 v%d, s%d, %d" % (vST, r, idx))
        del apend[keep:]
    def stamp_flush(helper=False):
        if not stamps: return
        if dbgst:
            I("s_mov_b64 exec, -1")
            va, vd = vST + 2, vST + 3
            I("v_mov_b32 v%d, 0x1000" % va)
            I("v_mov_b32 v%d, v%d" % (vd, vST))
            I("s_nop 4")
            mp = {3: 5, 5: 6, 6: 7, 8: 8, 17: 9, 9: 10, 10: 11, 11: 12, 13: 13, 4: 14} if helper else {1: 1, 2: 2, 3: 3, 4: 4, 0: 15}
            for lane, w in mp.items():
                I("s_mov_b32 s98, %d" % (4 * w))
                I("v_writelane_b32 v%d, s98, %d" % (va, lane))
            if not helper:
                I("v_readlane_b32 s98, v%d, 0" % vST)
                I("s_not_b32 s98, s98")
                I("v_writelane_b32 v%d, s98, 0" % vd)
            I("s_mov_b32 s92, s24"); I("s_mov_b32 s93, s25"); I("s_mov_b32 s94, 256"); I("s_mov_b32 s95, 0x20000")
            I("buffer_atomic_umax v%d, v%d, s[92:95], 0 offen sc1" % (vd, va))
        I("s_mov_b64 exec, -1")
        I("s_getreg_b32 s98, hwreg(HW_REG_XCC_ID)")
        I("v_writelane_b32 v%d, s98, 63" % vST)
        I("s_lshl_b32 s98, s2, 3")
        I("s_add_u32 s98, s98, s28")
        I("s_lshl_b32 s98, s98, 8")
        I("s_add_u32 s98, s98, %d" % DBG)
        I("v_lshlrev_b32 v%d, 2, v0" % (vST + 1))
        I("buffer_store_dword v%d, v%d, s[36:39], s98 offen" % (vST, vST + 1))
        if tl:
            I("s_add_u32 s98, s98, 0x80000")
            I("buffer_store_dword v%d, v%d, s[36:39], s98 offen" % (vST - 1, vST + 1))

    def rnd(dst, src):
        I("v_cvt_pk_bf16_f32 v%d, v%d, v%d" % (dst, src, src))
        I("v_and_b32 v%d, 0xffff0000, v%d" % (dst, dst))

    def swap_reduce(op, v, t):
        I("v_mov_b32 v%d, v%d" % (t, v))
        I("v_permlane16_swap_b32 v%d, v%d" % (t, v))
        I("%s v%d, v%d, v%d" % (op, v, v, t))
        I("v_mov_b32 v%d, v%d" % (t, v))
        I("v_permlane32_swap_b32 v%d, v%d" % (t, v))
        I("%s v%d, v%d, v%d" % (op, v, v, t))

    I("s_cmp_ge_u32 s2, 256")
    I("s_cbranch_scc1 L_end")
    I("s_load_dwordx16 s[4:19], s[0:1], 0")
    I("s_load_dwordx8 s[20:27], s[0:1], 64")
    I("v_lshrrev_b32 v1, 6, v0")
    I("v_and_b32 v0, 63, v0")
    I("v_readfirstlane_b32 s28, v1")
    I("s_lshr_b32 s29, s2, 3")
    I("s_and_b32 s30, s2, 7")
    I("s_bfe_u32 s31, s2, 0x10001")
    I("s_bfe_u32 s32, s2, 0x10002")
    I("s_lshl_b32 s32, s32, 1")
    I("s_and_b32 s33, s2, 1")
    I("s_or_b32 s32, s32, s33")
    I("s_lshl_b32 s33, s31, 5")
    I("s_add_u32 s33, s33, s29")
    I("s_mov_b32 s66, s33")
    I("s_sub_u32 s68, s33, 44")
    I("s_cmp_lt_u32 s33, 43")
    I("s_cselect_b32 s67, 1, 0")
    I("s_cmp_lt_u32 s68, 16")
    I("s_cselect_b32 s67, 2, s67")
    I("s_bfe_u32 s69, s29, 0x20001")
    I("s_cmp_lg_u32 s69, s32")
    I("s_cselect_b32 s67, 0, s67")
    if stamps:
        I("v_mov_b32 v%d, 0" % vST)
        if tl: I("v_mov_b32 v%d, 0" % (vST - 1))
        I("s_memrealtime s[78:79]")
    I("s_waitcnt lgkmcnt(0)")
    if stamps:
        I("v_writelane_b32 v%d, s78, 0" % vST)
        astamp(12)
    I("s_mov_b32 s36, s26")
    I("s_mov_b32 s37, s27")
    I("s_mov_b32 s38, %d" % WSREC)
    I("s_mov_b32 s39, 0x20000")
    I("s_cmp_ge_u32 s28, 4")
    I("s_cbranch_scc1 L_helper")

    vOff = 1; vQ = 2; vAcc = 6; vM = 14; vL = 15
    a = [16, 17, 18, 19]; u0 = 20; u1 = 21; vw = 22; vt = 23; vsc = 24; vmx = 25; vmn = 26; vp = 27; val = 28
    vplo = 29; vphi = 30; vT = [31, 32, 34, 35]; vCA = 33
    RING = [36 + 32 * i for i in range(RD)]
    sVAL = [55, 56, 70, 71]
    P0 = 36 + 32 * RD
    PK = [P0 + 32 * i for i in range(NPARK)]
    assert P0 + 32 * max(NPARK, 1) <= 248
    I("v_lshlrev_b32 v%d, 4, v0" % vOff)
    I("s_lshl_b32 s52, s33, 21")
    I("s_add_u32 s40, s6, s52")
    I("s_addc_u32 s41, s7, 0")
    I("s_mov_b32 s42, 0x200000")
    I("s_mov_b32 s43, 0x20000")
    I("s_add_u32 s44, s8, s52")
    I("s_addc_u32 s45, s9, 0")
    I("s_mov_b32 s46, 0x200000")
    I("s_mov_b32 s47, 0x20000")
    I("s_mov_b32 s48, s26")
    I("s_mov_b32 s49, s27")
    I("s_mov_b32 s50, 0")
    I("s_mov_b32 s51, 0x20000")
    if contig:
        I("s_mul_i32 s60, s32, %d" % (4 * NS))
    else:
        I("s_lshl_b32 s60, s32, 2")
    I("s_add_u32 s60, s60, s28")
    USH = 2 if contig else 4
    if rot:
        I("s_mul_i32 s58, s33, %d" % rot)
    def rotate():
        if rot:
            I("s_add_u32 s52, s52, s58")
            I("s_and_b32 s52, s52, 511")
    I("s_lshl_b32 s61, s33, 8")
    I("s_add_u32 s61, s61, %d" % CNT)
    I("v_mov_b32 v%d, s61" % vCA)
    if b0: I("s_barrier")
    outstanding = [0]
    def paced():
        if outstanding[0] >= CAP:
            I("s_waitcnt vmcnt(%d)" % (CAP - 1))
            outstanding[0] = CAP - 1
        outstanding[0] += 1
    def ld(base, kv, j, soff="s52"):
        r = base + 16 * kv + 4 * j
        I("buffer_load_dwordx4 v[%d:%d], v%d, %s, %s offen offset:%d nt" % (r, r + 3, vOff, "s[40:43]" if kv == 0 else "s[44:47]", soff, 1024 * j))
    def issue_atomic(slot):
        I("s_cmp_lt_u32 s54, %d" % NS)
        I("s_cselect_b32 s50, 0, %d" % WSREC)
        I("v_mov_b32 v%d, 1" % vT[slot])
        I("s_mov_b64 exec, 1")
        I("buffer_atomic_add v%d, v%d, s[48:51], 0 offen sc0 sc1" % (vT[slot], vCA))
        I("s_mov_b64 exec, -1")
        I("s_add_u32 s54, s54, 1")
    for ci, base in enumerate(PK + RING):
        I("s_add_u32 s52, s60, %d" % (ci << USH))
        rotate()
        I("s_lshl_b32 s52, s52, 12")
        if ci == NPARK: I("s_mov_b32 s54, %d" % NFILL)
        if ci >= NPARK:
            paced(); issue_atomic(ci - NPARK)
        for kv in range(2):
            for j in range(4):
                paced(); ld(base, kv, j)
        if ci < 6: astamp(27 + ci)
    I("s_mov_b32 s53, %d" % NFILL)
    for i in range(RD): I("s_mov_b32 s%d, 1" % sVAL[i])
    I("s_mov_b32 s57, 0")
    for i in range(8): I("v_mov_b32 v%d, 0" % (vAcc + i))
    I("v_mov_b32 v%d, 0xf149f2ca" % vM)
    I("v_mov_b32 v%d, 0" % vL)
    acollect(keep=1)
    stamp(1)
    I("s_barrier")
    I("v_and_b32 v%d, 15, v0" % vt)
    I("v_lshlrev_b32 v%d, 4, v%d" % (vt, vt))
    I("ds_read_b128 v[%d:%d], v%d offset:%d" % (vQ, vQ + 3, vt, L_Q))
    I("s_waitcnt lgkmcnt(0)")
    stamp(2)

    def consume(base, wait=None, reload=None):
        if nocomp:
            for kv in range(2):
                for j in range(4):
                    if wait: wait(kv, j)
                    r = base + 16 * kv + 4 * j
                    I("v_xor_b32 v%d, v%d, v%d" % (vAcc + j, r, vAcc + j))
                    if reload: reload(kv, j)
            return
        for j in range(4):
            if wait: wait(0, j)
            r = base + 4 * j
            I("v_dot2_f32_bf16 v%d, v%d, v%d, 0" % (a[j], r, vQ))
            for t in range(1, 4):
                I("v_dot2_f32_bf16 v%d, v%d, v%d, v%d" % (a[j], r + t, vQ + t, a[j]))
            if reload: reload(0, j)
        I("v_add_f32_dpp v%d, v%d, v%d row_ror:8 row_mask:0xf bank_mask:0x3" % (u0, a[0], a[0]))
        I("v_add_f32_dpp v%d, v%d, v%d row_ror:8 row_mask:0xf bank_mask:0xc" % (u0, a[2], a[2]))
        I("v_add_f32_dpp v%d, v%d, v%d row_ror:8 row_mask:0xf bank_mask:0x3" % (u1, a[1], a[1]))
        I("v_add_f32_dpp v%d, v%d, v%d row_ror:8 row_mask:0xf bank_mask:0xc" % (u1, a[3], a[3]))
        I("v_add_f32_dpp v%d, v%d, v%d row_half_mirror row_mask:0xf bank_mask:0x5" % (vw, u0, u0))
        I("v_add_f32_dpp v%d, v%d, v%d row_half_mirror row_mask:0xf bank_mask:0xa" % (vw, u1, u1))
        I("v_add_f32_dpp v%d, v%d, v%d quad_perm:[1,0,3,2] row_mask:0xf bank_mask:0xf" % (vt, vw, vw))
        I("v_add_f32_dpp v%d, v%d, v%d quad_perm:[2,3,0,1] row_mask:0xf bank_mask:0xf" % (vw, vt, vt))
        rnd(vw, vw)
        I("v_mul_f32 v%d, 0x3db504f3, v%d" % (vw, vw))
        rnd(vw, vw)
        I("v_mul_f32 v%d, 0x3fb8aa3b, v%d" % (vsc, vw))
        I("v_max_f32_dpp v%d, v%d, v%d row_ror:4 row_mask:0xf bank_mask:0xf" % (vmx, vsc, vsc))
        I("v_max_f32_dpp v%d, v%d, v%d row_ror:8 row_mask:0xf bank_mask:0xf" % (vmn, vmx, vmx))
        I("v_max_f32 v%d, v%d, v%d" % (vmn, vmn, vM))
        I("v_sub_f32 v%d, v%d, v%d" % (vp, vsc, vmn))
        I("v_sub_f32 v%d, v%d, v%d" % (val, vM, vmn))
        I("v_exp_f32 v%d, v%d" % (vp, vp))
        I("v_exp_f32 v%d, v%d" % (val, val))
        I("v_mov_b32 v%d, v%d" % (vM, vmn))
        I("v_cvt_pk_bf16_f32 v%d, v%d, 0" % (vplo, vp))
        I("v_lshlrev_b32 v%d, 16, v%d" % (vphi, vplo))
        I("v_fma_f32 v%d, v%d, v%d, v%d" % (vL, vL, val, vphi))
        for i in range(8):
            I("v_mul_f32 v%d, v%d, v%d" % (vAcc + i, vAcc + i, val))
        for j in range(4):
            if wait: wait(1, j)
            r = base + 16 + 4 * j
            for t in range(4):
                I("v_dot2c_f32_bf16_dpp v%d, v%d, v%d row_newbcast:%d row_mask:0xf bank_mask:0xf" % (vAcc + 2 * t, vplo, r + t, 4 * j))
                I("v_dot2c_f32_bf16_dpp v%d, v%d, v%d row_newbcast:%d row_mask:0xf bank_mask:0xf" % (vAcc + 2 * t + 1, vphi, r + t, 4 * j))
            if reload: reload(1, j)

    k.label("L_loop")
    for slot, base in enumerate(RING):
        if slot == 0:
            if stamps:
                I("s_and_b32 s62, s57, 7")
                I("s_cmp_lg_u32 s62, 0")
                I("s_cbranch_scc1 L_nost")
                I("s_memrealtime s[98:99]")
                I("s_lshr_b32 s62, s57, 3")
                I("s_add_u32 m0, s62, 20")
                I("s_waitcnt lgkmcnt(0)")
                I("s_nop 1")
                I("v_writelane_b32 v%d, s98, m0" % vST)
                k.label("L_nost")
            for pi in range(NPARK):
                I("s_cmp_eq_u32 s57, %d" % XP[pi])
                I("s_cbranch_scc1 L_park%d" % pi)
                k.label("L_park%d_ret" % pi)
            I("s_cmp_eq_u32 s57, %d" % XF)
            I("s_cbranch_scc1 L_flag")
            k.label("L_flag_ret")
            I("s_cmp_eq_u32 s57, %d" % XG)
            I("s_cbranch_scc1 L_go")
            k.label("L_go_ret")
        I("s_cmp_eq_u32 s%d, 0" % sVAL[slot])
        I("s_cbranch_scc1 L_fin")
        I("s_waitcnt vmcnt(%d)" % (9 * RD - 2))
        I("v_readfirstlane_b32 s52, v%d" % vT[slot])
        I("s_lshl_b32 s62, s53, %d" % USH)
        I("s_add_u32 s62, s62, s60")
        I("s_add_u32 s52, s52, %d" % (NS * 16))
        I("s_cmp_lt_u32 s53, %d" % NS)
        I("s_cselect_b32 s52, s62, s52")
        I("s_add_u32 s53, s53, 1")
        I("s_cmp_lt_u32 s52, 512")
        I("s_cselect_b32 s42, 0x200000, 0")
        I("s_cselect_b32 s46, 0x200000, 0")
        I("s_cselect_b32 s%d, 1, 0" % sVAL[slot])
        rotate()
        I("s_lshl_b32 s52, s52, 12")
        issue_atomic(slot)
        def wait(kv, j):
            if not (kv == 0 and j == 0):
                I("s_waitcnt vmcnt(%d)" % (9 * RD - 1))
        consume(base, wait, lambda kv, j, base=base: ld(base, kv, j))
        if tl:
            I("s_memrealtime s[98:99]")
            I("s_mov_b32 m0, s57")
            I("s_waitcnt lgkmcnt(0)")
            I("v_writelane_b32 v%d, s98, m0" % (vST - 1))
        I("s_add_u32 s57, s57, 1")
    I("s_branch L_loop")
    for pi in range(NPARK):
        k.label("L_park%d" % pi)
        if pi == 1: stamp(25)
        consume(PK[pi])
        if pi == 1: stamp(26)
        I("s_branch L_park%d_ret" % pi)
    k.label("L_go")
    I("v_mov_b32 v%d, %d" % (vt, L_GO))
    I("v_mov_b32 v%d, 1" % vw)
    I("ds_write_b32 v%d, v%d" % (vt, vw))
    I("s_branch L_go_ret")
    k.label("L_flag")
    I("s_mov_b32 s62, %d" % SPIN)
    I("v_mov_b32 v%d, %d" % (vt, L_FLAG))
    k.label("L_flagspin")
    I("ds_read_b32 v%d, v%d" % (vw, vt))
    I("s_waitcnt lgkmcnt(0)")
    I("v_readfirstlane_b32 s63, v%d" % vw)
    I("s_cmp_eq_u32 s63, 1")
    I("s_cbranch_scc1 L_flag_ret")
    I("s_sleep 8")
    I("s_sub_u32 s62, s62, 1")
    I("s_cbranch_scc0 L_flagspin")
    I("s_branch L_flag_ret")

    k.label("L_fin")
    stamp(3)
    I("v_add_f32_dpp v%d, v%d, v%d row_ror:4 row_mask:0xf bank_mask:0xf" % (vt, vL, vL))
    I("v_mov_b32 v%d, v%d" % (vmn, vM))
    I("v_add_f32_dpp v%d, v%d, v%d row_ror:8 row_mask:0xf bank_mask:0xf" % (vL, vt, vt))
    swap_reduce("v_max_f32", vmn, vt)
    I("v_sub_f32 v%d, v%d, v%d" % (val, vM, vmn))
    I("v_exp_f32 v%d, v%d" % (val, val))
    I("v_mul_f32 v%d, v%d, v%d" % (vL, vL, val))
    for i in range(8):
        I("v_mul_f32 v%d, v%d, v%d" % (vAcc + i, vAcc + i, val))
    swap_reduce("v_add_f32", vL, vt)
    for i in range(4):
        I("v_permlane32_swap_b32 v%d, v%d" % (vAcc + i, vAcc + i + 4))
    for i in range(4):
        I("v_add_f32 v%d, v%d, v%d" % (vAcc + i, vAcc + i, vAcc + i + 4))
    I("v_permlane16_swap_b32 v%d, v%d" % (vAcc + 0, vAcc + 2))
    I("v_permlane16_swap_b32 v%d, v%d" % (vAcc + 1, vAcc + 3))
    I("v_add_f32 v%d, v%d, v%d" % (vAcc + 0, vAcc + 0, vAcc + 2))
    I("v_add_f32 v%d, v%d, v%d" % (vAcc + 1, vAcc + 1, vAcc + 3))
    I("v_and_b32 v%d, 15, v0" % vt)
    I("v_lshrrev_b32 v%d, 4, v0" % vw)
    I("v_lshlrev_b32 v%d, 5, v%d" % (vt, vt))
    I("v_lshl_add_u32 v%d, v%d, 3, v%d" % (vt, vw, vt))
    I("s_lshl_b32 s62, s28, 9")
    I("v_add_u32 v%d, s62, v%d" % (vt, vt))
    I("ds_write_b64 v%d, v[%d:%d] offset:%d" % (vt, vAcc, vAcc + 1, L_PART))
    I("v_mov_b32 v%d, v%d" % (vM, vmn))
    I("s_lshl_b32 s62, s28, 3")
    I("v_mov_b32 v%d, s62" % vt)
    I("s_mov_b64 exec, 1")
    I("ds_write_b64 v%d, v[%d:%d] offset:%d" % (vt, vM, vL, L_MLP))
    I("s_mov_b64 exec, -1")
    I("s_waitcnt lgkmcnt(0)")
    I("s_barrier")
    I("s_cmp_lg_u32 s28, 0")
    I("s_cbranch_scc1 L_sdone")
    Z = P0
    I("v_mov_b32 v20, 0")
    I("v_lshlrev_b32 v21, 3, v0")
    I("ds_read_b128 v[%d:%d], v20 offset:%d" % (Z, Z + 3, L_MLP))
    I("ds_read_b128 v[%d:%d], v20 offset:%d" % (Z + 4, Z + 7, L_MLP + 16))
    for w in range(4):
        I("ds_read_b64 v[%d:%d], v21 offset:%d" % (Z + 8 + 2 * w, Z + 9 + 2 * w, L_PART + 512 * w))
    I("s_lshl_b32 s62, s2, 10")
    I("s_add_u32 s62, s62, %d" % OREC)
    I("s_waitcnt lgkmcnt(4)")
    MM = Z + 16; LL = Z + 17; O0 = Z + 18; O1 = Z + 19
    I("v_max_f32 v%d, v%d, v%d" % (MM, Z, Z + 2))
    I("v_max3_f32 v%d, v%d, v%d, v%d" % (MM, MM, Z + 4, Z + 6))
    for w in range(4):
        I("v_sub_f32 v%d, v%d, v%d" % (Z + 2 * w, Z + 2 * w, MM))
    for w in range(4):
        I("v_exp_f32 v%d, v%d" % (Z + 2 * w, Z + 2 * w))
    I("v_mul_f32 v%d, v%d, v%d" % (LL, Z, Z + 1))
    for w in range(1, 4):
        I("v_fmac_f32 v%d, v%d, v%d" % (LL, Z + 2 * w, Z + 2 * w + 1))
    I("s_waitcnt lgkmcnt(0)")
    I("v_mul_f32 v%d, v%d, v%d" % (O0, Z, Z + 8))
    I("v_mul_f32 v%d, v%d, v%d" % (O1, Z, Z + 9))
    for w in range(1, 4):
        I("v_fmac_f32 v%d, v%d, v%d" % (O0, Z + 2 * w, Z + 8 + 2 * w))
        I("v_fmac_f32 v%d, v%d, v%d" % (O1, Z + 2 * w, Z + 9 + 2 * w))
    I("s_mov_b32 s63, 0x%x" % SENT_CLAMP)
    for r in (MM, LL, O0, O1):
        I("v_min_u32 v%d, s63, v%d" % (r, r))
    I("buffer_store_dwordx2 v[%d:%d], v21, s[36:39], s62 offen sc1" % (O0, O1))
    I("s_mov_b64 exec, 1")
    I("buffer_store_dwordx2 v[%d:%d], v20, s[36:39], s62 offen offset:512 sc1" % (MM, LL))
    I("s_mov_b64 exec, -1")
    stamp(4)
    k.label("L_sdone")
    stamp_flush()
    I("s_endpgm")

    k.label("L_helper")
    if prio: I("s_setprio %d" % prio)
    I("s_sub_u32 s34, s28, 4")
    g = 1; n = 2
    I("v_lshrrev_b32 v%d, 4, v0" % g)
    I("v_and_b32 v%d, 15, v0" % n)
    I("s_mov_b32 s44, s10"); I("s_mov_b32 s45, s11"); I("s_mov_b32 s46, 0x400000"); I("s_mov_b32 s47, 0x20000")
    I("s_mov_b32 s40, s4"); I("s_mov_b32 s41, s5"); I("s_mov_b32 s42, 2048"); I("s_mov_b32 s43, 0x20000")
    I("v_lshrrev_b32 v3, 3, v%d" % n)
    I("v_lshlrev_b32 v4, 2, v3")
    I("v_add_u32 v4, v4, v%d" % g)
    I("v_lshlrev_b32 v5, 16, v4")
    I("v_and_b32 v6, 7, v%d" % n)
    I("v_lshl_add_u32 v5, v6, 3, v5")
    I("s_lshl_b32 s52, s30, 19")
    I("s_lshl_b32 s53, s29, 8")
    I("s_add_u32 s52, s52, s53")
    I("s_lshl_b32 s53, s34, 6")
    I("s_add_u32 s52, s52, s53")
    R = 16
    for j in range(8):
        I("buffer_load_dwordx2 v[%d:%d], v5, s[44:47], s52 offen%s" % (R + 2 * j, R + 2 * j + 1, " nt" if ntq else ""))
        if j < 7: I("s_add_u32 s52, s52, 8192")
    astamp(15)
    XFULL = 48
    I("v_and_b32 v7, 1, v0")
    I("v_lshlrev_b32 v7, 10, v7")
    I("v_lshrrev_b32 v8, 1, v0")
    I("v_lshl_add_u32 v8, v8, 5, v7")
    I("buffer_load_dwordx4 v[%d:%d], v8, s[40:43], 0 offen" % (XFULL, XFULL + 3))
    I("buffer_load_dwordx4 v[%d:%d], v8, s[40:43], 0 offen offset:16" % (XFULL + 4, XFULL + 7))
    XA = 56
    I("v_bfe_u32 v9, v%d, 1, 1" % n)
    I("v_lshlrev_b32 v9, 2, v9")
    I("v_add_u32 v9, v9, v%d" % g)
    I("v_lshl_add_u32 v9, v9, 4, v7")
    I("s_lshl_b32 s53, s30, 7")
    I("buffer_load_dwordx4 v[%d:%d], v9, s[40:43], s53 offen" % (XA, XA + 3))
    I("s_load_dword s35, s[26:27], %d" % EPOCH)
    if b0: I("s_barrier")
    I("v_mov_b32 v14, 0")
    I("v_mov_b32 v15, 0")
    I("v_mov_b32 v12, %d" % L_FLAG)
    I("ds_write_b64 v12, v[14:15]")
    I("s_mov_b32 s64, 0x05040100")
    I("s_mov_b32 s65, 0x07060302")
    astamp(1)
    F = 64
    I("s_waitcnt vmcnt(1)")
    astamp(14)
    for t in range(8):
        I("v_lshlrev_b32 v%d, 16, v%d" % (F + 2 * t, XFULL + t))
        I("v_and_b32 v%d, 0xffff0000, v%d" % (F + 2 * t + 1, XFULL + t))
    def lane_par_reduce(v, t):
        I("v_add_f32_dpp v%d, v%d, v%d row_ror:2 row_mask:0xf bank_mask:0xf" % (t, v, v))
        I("v_add_f32_dpp v%d, v%d, v%d row_ror:4 row_mask:0xf bank_mask:0xf" % (v, t, t))
        I("v_add_f32_dpp v%d, v%d, v%d row_ror:8 row_mask:0xf bank_mask:0xf" % (t, v, v))
        I("v_mov_b32 v%d, v%d" % (v, t))
        swap_reduce("v_add_f32", v, t)
    I("v_add_f32 v12, v%d, v%d" % (F, F + 1))
    I("v_add_f32 v13, v%d, v%d" % (F + 2, F + 3))
    for t in range(4, 16, 2):
        I("v_add_f32 v12, v12, v%d" % (F + t))
        I("v_add_f32 v13, v13, v%d" % (F + t + 1))
    I("v_add_f32 v12, v12, v13")
    lane_par_reduce(12, 13)
    I("v_mul_f32 v12, 0x3b000000, v12")
    I("v_mov_b32 v14, 0")
    I("v_mov_b32 v15, 0")
    for t in range(16):
        I("v_sub_f32 v%d, v%d, v12" % (F + t, F + t))
    for t in range(0, 16, 2):
        I("v_fmac_f32 v14, v%d, v%d" % (F + t, F + t))
        I("v_fmac_f32 v15, v%d, v%d" % (F + t + 1, F + t + 1))
    I("v_add_f32 v14, v14, v15")
    lane_par_reduce(14, 13)
    I("v_mul_f32 v14, 0x3b000000, v14")
    rnd(14, 14)
    I("v_add_f32 v14, 0x3727c5ac, v14")
    rnd(14, 14)
    I("v_sqrt_f32 v14, v14")
    rnd(14, 14)
    I("v_rcp_f32 v14, v14")
    rnd(12, 12)
    A = 60
    I("s_waitcnt vmcnt(0)")
    for t in range(4):
        I("v_lshlrev_b32 v%d, 16, v%d" % (F + 0, XA + t))
        I("v_and_b32 v%d, 0xffff0000, v%d" % (F + 1, XA + t))
        I("v_sub_f32 v%d, v%d, v12" % (F + 0, F + 0))
        I("v_sub_f32 v%d, v%d, v12" % (F + 1, F + 1))
        I("v_cvt_pk_bf16_f32 v%d, v%d, v%d" % (F + 2, F + 0, F + 1))
        I("v_lshlrev_b32 v%d, 16, v%d" % (F + 0, F + 2))
        I("v_and_b32 v%d, 0xffff0000, v%d" % (F + 1, F + 2))
        I("v_mul_f32 v%d, v%d, v14" % (F + 0, F + 0))
        I("v_mul_f32 v%d, v%d, v14" % (F + 1, F + 1))
        I("v_cvt_pk_bf16_f32 v%d, v%d, v%d" % (A + t, F + 0, F + 1))
    Bc = 32
    def perm4(src, dst):
        for c in range(4):
            for jj in range(4):
                I("v_perm_b32 v%d, v%d, v%d, s%d" % (dst + 4 * c + jj, src + 2 * (2 * jj + 1) + (c >> 1), src + 2 * (2 * jj) + (c >> 1), 64 + (c & 1)))
    astamp(16)
    perm4(R, Bc)
    D = 80
    for c in range(4):
        I("v_mfma_f32_16x16x32_bf16 v[%d:%d], v[%d:%d], v[%d:%d], 0" % (D + 4 * c, D + 4 * c + 3, A, A + 3, Bc + 4 * c, Bc + 4 * c + 3))
    I("s_waitcnt lgkmcnt(0)")
    I("s_mul_i32 s35, s35, 0x9E3779B1")
    I("s_add_u32 s35, s35, 0x7F4A7C15")
    G = 96
    for c in range(4):
        I("v_mov_b32 v%d, s35" % (G + 2 * c + 1))
    for c in range(4):
        d = D + 4 * c
        I("v_add_f32_dpp v%d, v%d, v%d row_ror:8 row_mask:0xf bank_mask:0x3" % (G + 2 * c, d + 2, d + 0))
        I("v_add_f32_dpp v%d, v%d, v%d row_ror:8 row_mask:0xf bank_mask:0xc" % (G + 2 * c, d + 1, d + 3))
    I("v_lshlrev_b32 v3, 13, v3")
    I("v_lshl_add_u32 v3, v6, 5, v3")
    I("s_lshl_b32 s52, s29, 4")
    I("s_add_u32 s53, s52, s30")
    I("s_lshl_b32 s53, s53, 10")
    I("s_lshl_b32 s54, s34, 8")
    I("s_add_u32 s53, s53, s54")
    I("s_add_u32 s53, s53, %d" % QG)
    I("s_mov_b64 exec, 0xffff")
    I("buffer_store_dwordx4 v[%d:%d], v3, s[36:39], s53 offen sc1" % (G, G + 3))
    I("buffer_store_dwordx4 v[%d:%d], v3, s[36:39], s53 offen offset:16 sc1" % (G + 4, G + 7))
    I("s_mov_b64 exec, -1")
    astamp(2)
    I("v_lshrrev_b32 v3, 3, v0")
    I("v_lshlrev_b32 v3, 10, v3")
    I("v_and_b32 v4, 7, v0")
    I("v_lshl_add_u32 v3, v4, 5, v3")
    I("s_lshl_b32 s53, s31, 3")
    I("s_add_u32 s53, s53, s52")
    I("s_lshl_b32 s53, s53, 10")
    I("s_add_u32 s53, s53, s54")
    I("s_add_u32 s53, s53, %d" % QG)
    Q2 = 104
    I("s_cmp_lg_u32 s34, 0")
    I("s_cbranch_scc1 L_noinit")
    I("v_lshlrev_b32 v8, 4, v0")
    I("v_mov_b32 v16, -1"); I("v_mov_b32 v17, -1"); I("v_mov_b32 v18, -1"); I("v_mov_b32 v19, -1")
    I("s_lshl_b32 s56, s2, 10")
    I("s_add_u32 s56, s56, %d" % OREC)
    I("buffer_store_dwordx4 v[16:19], v8, s[36:39], s56 offen sc1")
    I("v_lshlrev_b32 v9, 3, v0")
    I("s_lshl_b32 s56, s2, 9")
    I("s_add_u32 s56, s56, %d" % YREC)
    I("buffer_store_dwordx2 v[16:17], v9, s[36:39], s56 offen sc1")
    I("v_lshlrev_b32 v9, 2, v0")
    I("s_lshl_b32 s56, s66, 7")
    I("s_add_u32 s56, s56, %d" % HHBUF)
    I("s_lshl_b32 s57, s68, 7")
    I("s_add_u32 s57, s57, %d" % HBUF)
    I("s_cmp_eq_u32 s67, 2")
    I("s_cselect_b32 s56, s57, s56")
    I("s_cmp_eq_u32 s67, 0")
    I("s_cselect_b32 s56, %d, s56" % WSREC)
    I("s_mov_b64 exec, 0xffffffff")
    I("buffer_store_dword v16, v9, s[36:39], s56 offen sc1")
    I("v_mov_b32 v20, 0")
    I("s_lshl_b32 s57, s33, 8")
    I("s_add_u32 s57, s57, %d" % CNT)
    I("s_cmp_eq_u32 s32, 0")
    I("s_cselect_b32 s56, s57, %d" % WSREC)
    I("s_mov_b64 exec, 1")
    I("buffer_store_dword v20, v9, s[36:39], s56 offen sc1")
    I("s_mov_b64 exec, -1")
    k.label("L_noinit")
    PS = [128 + 8 * i for i in range(NPOLL)]
    def qissue(i):
        I("buffer_load_dwordx4 v[%d:%d], v3, s[36:39], s53 offen sc1" % (PS[i], PS[i] + 3))
        I("buffer_load_dwordx4 v[%d:%d], v3, s[36:39], s53 offen offset:16 sc1" % (PS[i] + 4, PS[i] + 7))
    for i in range(NPOLL):
        sl = SL0 if i == 0 else SL1
        if sl: I("s_sleep %d" % sl)
        qissue(i)
    I("s_mov_b32 s55, %d" % SPIN)
    k.label("L_qpoll")
    for i in range(NPOLL):
        P_ = PS[i]
        I("s_waitcnt vmcnt(%d)" % (2 * (NPOLL - 1)))
        I("v_xor_b32 v5, s35, v%d" % (P_ + 1))
        I("v_xor_b32 v6, s35, v%d" % (P_ + 3))
        I("v_xor_b32 v7, s35, v%d" % (P_ + 5))
        I("v_xor_b32 v8, s35, v%d" % (P_ + 7))
        I("v_or3_b32 v5, v5, v6, v7")
        I("v_or_b32 v5, v5, v8")
        I("v_cmp_ne_u32 vcc, 0, v5")
        I("s_cbranch_vccz L_qok%d" % i)
        qissue(i)
    I("s_sub_u32 s55, s55, 1")
    I("s_cbranch_scc0 L_qpoll")
    for i in range(NPOLL - 1, -1, -1):
        k.label("L_qok%d" % i)
        for t in (0, 2, 4, 6):
            I("v_mov_b32 v%d, v%d" % (Q2 + t, PS[i] + t))
        if i: I("s_branch L_qok")
    k.label("L_qok")
    if prio != prio2: I("s_setprio %d" % prio2)
    I("s_cmp_lg_u32 s34, 0")
    I("s_cbranch_scc1 L_nocnt")
    I("s_mov_b32 s48, s24"); I("s_mov_b32 s49, s25"); I("s_mov_b32 s50, 256"); I("s_mov_b32 s51, 0x20000")
    I("v_mov_b32 v16, 1")
    I("s_mov_b64 exec, 1")
    I("buffer_atomic_add v16, off, s[48:51], 0 sc1")
    I("s_mov_b64 exec, -1")
    k.label("L_nocnt")
    I("v_permlane32_swap_b32 v%d, v%d" % (Q2 + 0, Q2 + 4))
    I("v_permlane32_swap_b32 v%d, v%d" % (Q2 + 2, Q2 + 6))
    I("v_add_f32 v%d, v%d, v%d" % (Q2 + 0, Q2 + 0, Q2 + 4))
    I("v_add_f32 v%d, v%d, v%d" % (Q2 + 2, Q2 + 2, Q2 + 6))
    I("v_permlane16_swap_b32 v%d, v%d" % (Q2 + 0, Q2 + 2))
    I("v_add_f32 v%d, v%d, v%d" % (Q2 + 0, Q2 + 0, Q2 + 2))
    I("v_add_f32_dpp v%d, v%d, v%d row_ror:8 row_mask:0xf bank_mask:0xf" % (Q2 + 1, Q2 + 0, Q2 + 0))
    I("v_cvt_pk_bf16_f32 v%d, v%d, v%d" % (Q2 + 1, Q2 + 1, Q2 + 1))
    I("v_lshl_add_u32 v4, v4, 2, v%d" % g)
    I("s_lshl_b32 s54, s34, 5")
    I("v_add_u32 v4, s54, v4")
    I("v_lshlrev_b32 v4, 1, v4")
    I("ds_write_b16 v4, v%d offset:%d" % (Q2 + 1, L_Q))
    I("s_waitcnt lgkmcnt(0)")
    astamp(3)
    I("s_barrier")

    acollect()
    if warm:
        I("s_lshl_b32 s52, s2, 2")
        I("s_add_u32 s52, s52, s34")
        I("s_lshl_b32 s52, s52, 10")
        I("s_add_u32 s53, s52, 0x100000")
        I("v_lshlrev_b32 v8, 4, v0")
        for mi in range(3):
            I("s_mov_b32 s40, s%d" % (16 + 2 * mi + (0 if mi < 2 else 0))); I("s_mov_b32 s41, s%d" % (17 + 2 * mi)); I("s_mov_b32 s42, %d" % (1376 * 1024)); I("s_mov_b32 s43, 0x20000")
            I("buffer_load_dwordx4 v[100:103], v8, s[40:43], s52 offen%s" % (" nt" if warmnt else ""))
            I("buffer_load_dwordx4 v[100:103], v8, s[40:43], s53 offen%s" % (" nt" if warmnt else ""))
    I("s_cmp_lg_u32 s34, 0")
    I("s_cbranch_scc1 L_noflag")
    I("s_mov_b32 s55, %d" % SPIN)
    I("v_mov_b32 v17, %d" % L_GO)
    k.label("L_gospin")
    I("ds_read_b32 v16, v17")
    I("s_waitcnt lgkmcnt(0)")
    I("v_readfirstlane_b32 s52, v16")
    I("s_cmp_eq_u32 s52, 1")
    I("s_cbranch_scc1 L_gook")
    I("s_sleep 16")
    I("s_sub_u32 s55, s55, 1")
    I("s_cbranch_scc0 L_gospin")
    k.label("L_gook")
    I("s_mov_b32 s55, %d" % SPIN)
    k.label("L_cntpoll")
    I("buffer_load_dword v16, off, s[48:51], 0 sc1")
    I("s_waitcnt vmcnt(0)")
    I("v_readfirstlane_b32 s52, v16")
    I("s_cmp_ge_u32 s52, 256")
    I("s_cbranch_scc1 L_cntok")
    I("s_sleep 64")
    I("s_sub_u32 s55, s55, 1")
    I("s_cbranch_scc0 L_cntpoll")
    k.label("L_cntok")
    I("v_mov_b32 v16, 1")
    I("v_mov_b32 v17, %d" % L_FLAG)
    I("ds_write_b32 v17, v16")
    I("s_waitcnt lgkmcnt(0)")
    k.label("L_noflag")
    stamp(13)

    BW = 112
    I("s_mov_b32 s44, s12"); I("s_mov_b32 s45, s13"); I("s_mov_b32 s46, 0x400000"); I("s_mov_b32 s47, 0x20000")
    I("v_lshlrev_b32 v3, 13, v%d" % g)
    I("v_lshl_add_u32 v3, v%d, 3, v3" % n)
    I("s_lshl_b32 s52, s29, 17")
    I("s_lshl_b32 s53, s34, 15")
    I("s_add_u32 s52, s52, s53")
    I("s_lshl_b32 s53, s30, 7")
    I("s_add_u32 s52, s52, s53")
    I("s_add_u32 s53, s52, 4096")
    for j in range(8):
        I("buffer_load_dwordx2 v[%d:%d], v3, s[44:47], s%d offen offset:%d%s" % (R + 2 * j, R + 2 * j + 1, 52 + (j >> 2), 1024 * (j & 3), " nt" if nto else ""))
    I("v_lshrrev_b32 v4, 3, v%d" % n)
    I("v_lshlrev_b32 v4, 2, v4")
    I("v_add_u32 v4, v4, v%d" % g)
    I("v_and_b32 v5, 7, v%d" % n)
    W = 128
    if warm:
        I("s_cmp_eq_u32 s67, 0")
        I("s_cbranch_scc1 L_wf_ok")
        I("s_mov_b32 s55, %d" % SPIN)
        I("v_mov_b32 v7, %d" % L_FLAG)
        k.label("L_wf_spin")
        I("ds_read_b32 v6, v7")
        I("s_waitcnt lgkmcnt(0)")
        I("v_readfirstlane_b32 s52, v6")
        I("s_cmp_eq_u32 s52, 1")
        I("s_cbranch_scc1 L_wf_ok")
        I("s_sleep 16")
        I("s_sub_u32 s55, s55, 1")
        I("s_cbranch_scc0 L_wf_spin")
        k.label("L_wf_ok")
    I("s_cmp_eq_u32 s67, 1")
    I("s_cbranch_scc1 L_pf_gu")
    I("s_cmp_eq_u32 s67, 2")
    I("s_cbranch_scc1 L_pf_down")
    I("s_waitcnt vmcnt(0)")
    perm4(R, BW)
    I("s_branch L_pf_done")

    k.label("L_pf_gu")
    I("s_mov_b32 s52, 2752*8")
    I("v_mul_lo_u32 v6, v4, s52")
    I("v_lshl_add_u32 v6, v5, 3, v6")
    for mat in range(2):
        I("s_mov_b32 s40, s%d" % (16 + 2 * mat)); I("s_mov_b32 s41, s%d" % (17 + 2 * mat)); I("s_mov_b32 s42, %d" % (512 * 2752)); I("s_mov_b32 s43, 0x20000")
        for ds in range(2):
            I("s_mul_i32 s52, s34, %d" % (128 * 2752))
            I("s_lshl_b32 s53, s66, 6")
            I("s_add_u32 s52, s52, s53")
            if ds: I("s_add_u32 s52, s52, %d" % (64 * 2752))
            raw = W + 16 * (ds * 2 + mat + 1)
            for jj in range(8):
                if not nopref: I("buffer_load_dwordx2 v[%d:%d], v6, s[40:43], s52 offen%s" % (raw + 2 * jj, raw + 2 * jj + 1, " nt" if ntf else ""))
                if jj < 7: I("s_add_u32 s52, s52, 2752")
    I("s_waitcnt vmcnt(%d)" % (0 if nopref else 32))
    perm4(R, BW)
    I("s_waitcnt vmcnt(0)")
    for i in range(4): perm4(W + 16 * (i + 1), W + 16 * i)
    for t in range(4): I("v_mov_b32 v%d, 0x3f803f80" % (16 + t))
    CS = 20
    for mat in range(2):
        for c in range(4):
            d = 32 + 4 * (mat * 4 + c)
            b0_ = W + 16 * mat + 4 * c
            b1_ = W + 16 * (2 + mat) + 4 * c
            I("v_mfma_f32_16x16x32_bf16 v[%d:%d], v[16:19], v[%d:%d], 0" % (d, d + 3, b0_, b0_ + 3))
            I("v_mfma_f32_16x16x32_bf16 v[%d:%d], v[16:19], v[%d:%d], v[%d:%d]" % (d, d + 3, b1_, b1_ + 3, d, d + 3))
    for t in range(8):
        d = 32 + 4 * t
        I("v_add_f32_dpp v%d, v%d, v%d row_ror:8 row_mask:0xf bank_mask:0xf" % (CS + t, d, d))
    I("s_lshl_b32 s52, s34, 8")
    I("v_lshlrev_b32 v6, 4, v5")
    I("v_add_u32 v6, s52, v6")
    I("s_mov_b64 exec, 0xff")
    I("ds_write_b128 v6, v[%d:%d] offset:%d" % (CS, CS + 3, L_CS))
    I("ds_write_b128 v6, v[%d:%d] offset:%d" % (CS + 4, CS + 7, L_CS + 128))
    I("s_mov_b64 exec, -1")
    I("s_branch L_pf_done")
    k.label("L_pf_down")
    I("v_lshlrev_b32 v6, 13, v4")
    I("v_lshl_add_u32 v6, v5, 3, v6")
    I("s_mov_b32 s40, s20"); I("s_mov_b32 s41, s21"); I("s_mov_b32 s42, %d" % (1376 * 1024)); I("s_mov_b32 s43, 0x20000")
    for i in range(6):
        I("s_lshl_b32 s52, s34, 16")
        I("s_lshl_b32 s53, s68, 6")
        I("s_add_u32 s52, s52, s53")
        if i: I("s_add_u32 s52, s52, %d" % (i * 4 * 65536))
        I("s_add_u32 s53, s52, 4096")
        raw = W + 16 * (i + 1)
        for jj in range(8):
            if not nopref: I("buffer_load_dwordx2 v[%d:%d], v6, s[40:43], s%d offen offset:%d%s" % (raw + 2 * jj, raw + 2 * jj + 1, 52 + (jj >> 2), 1024 * (jj & 3), " nt" if ntf else ""))
    I("s_mov_b32 s44, s4"); I("s_mov_b32 s45, s5"); I("s_mov_b32 s46, 2048"); I("s_mov_b32 s47, 0x20000")
    I("v_and_b32 v7, 1, v0")
    I("v_lshl_add_u32 v7, v7, 2, v%d" % g)
    I("v_lshlrev_b32 v7, 1, v7")
    I("v_bfe_u32 v8, v0, 1, 1")
    I("v_lshl_add_u32 v9, v8, 10, v7")
    I("s_lshl_b32 s52, s68, 6")
    I("s_lshl_b32 s53, s34, 4")
    I("s_add_u32 s52, s52, s53")
    I("buffer_load_ushort v15, v9, s[44:47], s52 offen")
    I("s_waitcnt vmcnt(%d)" % (1 if nopref else 49))
    perm4(R, BW)
    I("s_waitcnt vmcnt(0)")
    for i in range(6): perm4(W + 16 * (i + 1), W + 16 * i)
    I("v_lshlrev_b32 v15, 16, v15")
    k.label("L_pf_done")
    stamp(4)

    I("v_bfe_u32 v6, v%d, 1, 1" % n)
    I("v_and_b32 v7, 1, v%d" % n)
    I("v_lshl_or_b32 v6, v7, 1, v6")
    I("v_and_b32 v7, 4, v%d" % n)
    I("v_or_b32 v6, v6, v7")
    I("v_lshlrev_b32 v6, 10, v6")
    I("v_lshl_add_u32 v7, v%d, 5, v6" % g)
    I("s_lshl_b32 s52, s29, 13")
    I("s_add_u32 s52, s52, %d" % OREC)
    I("s_lshl_b32 s53, s34, 7")
    I("s_add_u32 s53, s53, s52")
    I("s_mov_b32 s55, %d" % SPIN)
    I("s_waitcnt lgkmcnt(0)")
    I("s_barrier")
    stamp(5)
    O = 16
    k.label("L_opoll")
    I("buffer_load_dwordx4 v[%d:%d], v7, s[36:39], s53 offen sc1" % (O, O + 3))
    I("buffer_load_dwordx4 v[%d:%d], v7, s[36:39], s53 offen offset:16 sc1" % (O + 4, O + 7))
    I("buffer_load_dwordx2 v[%d:%d], v6, s[36:39], s52 offen offset:512 sc1" % (O + 8, O + 9))
    I("s_waitcnt vmcnt(0)")
    I("v_max3_u32 v12, v%d, v%d, v%d" % (O, O + 1, O + 2))
    I("v_max3_u32 v13, v%d, v%d, v%d" % (O + 3, O + 4, O + 5))
    I("v_max3_u32 v12, v12, v%d, v%d" % (O + 6, O + 7))
    I("v_max3_u32 v13, v13, v%d, v%d" % (O + 8, O + 9))
    I("v_max_u32 v12, v12, v13")
    I("v_cmp_eq_u32 vcc, -1, v12")
    I("s_sub_u32 s55, s55, 1")
    I("s_cbranch_scc1 L_opoll_out")
    I("s_mov_b64 exec, vcc")
    I("s_cbranch_execnz L_opoll")
    k.label("L_opoll_out")
    I("s_mov_b64 exec, -1")
    stamp(6)
    m_, l_ = O + 8, O + 9
    I("v_max_f32_dpp v12, v%d, v%d quad_perm:[2,3,0,1] row_mask:0xf bank_mask:0xf" % (m_, m_))
    I("v_max_f32_dpp v13, v12, v12 row_ror:4 row_mask:0xf bank_mask:0xf")
    I("v_sub_f32 v12, v%d, v13" % m_)
    I("v_exp_f32 v12, v12")
    I("v_mul_f32 v13, v12, v%d" % l_)
    I("v_add_f32_dpp v14, v13, v13 quad_perm:[2,3,0,1] row_mask:0xf bank_mask:0xf")
    I("v_add_f32_dpp v13, v14, v14 row_ror:4 row_mask:0xf bank_mask:0xf")
    I("v_rcp_f32 v13, v13")
    I("v_mul_f32 v12, v12, v13")
    for t in range(8): I("v_mul_f32 v%d, v%d, v12" % (O + t, O + t))
    for t in range(8): I("v_add_f32_dpp v%d, v%d, v%d quad_perm:[2,3,0,1] row_mask:0xf bank_mask:0xf" % (32 + t, O + t, O + t))
    for t in range(8): I("v_add_f32_dpp v%d, v%d, v%d row_ror:4 row_mask:0xf bank_mask:0xf" % (O + t, 32 + t, 32 + t))
    for t in range(4): I("v_cvt_pk_bf16_f32 v%d, v%d, v%d" % (28 + t, O + 2 * t, O + 2 * t + 1))
    D = 32
    for c in range(4):
        I("v_mfma_f32_16x16x32_bf16 v[%d:%d], v[28:31], v[%d:%d], 0" % (D + 4 * c, D + 4 * c + 3, BW + 4 * c, BW + 4 * c + 3))
    I("s_lshl_b32 s52, s34, 9")
    I("s_add_u32 s52, s52, %d" % L_YP)
    I("v_lshlrev_b32 v13, 4, v%d" % n)
    I("v_add_u32 v13, s52, v13")
    I("s_mov_b64 exec, 0xffff")
    for bb in range(2):
        I("ds_write2_b32 v13, v%d, v%d offset0:%d offset1:%d" % (D + bb, D + 4 + bb, 64 * bb, 64 * bb + 1))
        I("ds_write2_b32 v13, v%d, v%d offset0:%d offset1:%d" % (D + 8 + bb, D + 12 + bb, 64 * bb + 2, 64 * bb + 3))
    I("s_mov_b64 exec, -1")
    I("s_waitcnt lgkmcnt(0)")
    I("s_barrier")
    stamp(7)
    I("s_cmp_lg_u32 s34, 0")
    I("s_cbranch_scc1 L_noY")
    I("v_lshlrev_b32 v12, 4, v0")
    I("s_mov_b64 exec, 0xffffffff")
    for w in range(4):
        I("ds_read_b128 v[%d:%d], v12 offset:%d" % (16 + 4 * w, 19 + 4 * w, L_YP + 512 * w))
    I("s_lshl_b32 s52, s2, 9")
    I("s_add_u32 s52, s52, %d" % YREC)
    I("s_mov_b32 s63, 0x%x" % SENT_CLAMP)
    I("s_waitcnt lgkmcnt(2)")
    for t in range(4): I("v_add_f32 v%d, v%d, v%d" % (16 + t, 16 + t, 20 + t))
    I("s_waitcnt lgkmcnt(0)")
    for t in range(4): I("v_add_f32 v%d, v%d, v%d" % (24 + t, 24 + t, 28 + t))
    for t in range(4): I("v_add_f32 v%d, v%d, v%d" % (16 + t, 16 + t, 24 + t))
    for t in range(4): I("v_min_u32 v%d, s63, v%d" % (16 + t, 16 + t))
    I("buffer_store_dwordx4 v[16:19], v12, s[36:39], s52 offen sc1")
    I("s_mov_b64 exec, -1")
    stamp(8)
    k.label("L_noY")
    I("s_cmp_eq_u32 s67, 1")
    I("s_cbranch_scc1 L_gu")
    I("s_cmp_eq_u32 s67, 2")
    I("s_cbranch_scc1 L_down")
    I("s_branch L_hend")

    def a_addr(dst):
        I("v_bfe_u32 v12, v%d, 1, 1" % n)
        I("v_lshlrev_b32 v12, 2, v12")
        I("v_add_u32 v12, v12, v%d" % g)
        I("v_lshlrev_b32 v12, 5, v12")
        I("v_and_b32 v13, 1, v%d" % n)
        I("v_lshl_add_u32 v%d, v13, 4, v12" % dst)
    def poll(name, loads, regs, execmask):
        I("s_mov_b32 s55, %d" % SPIN)
        if execmask is not None: I("s_mov_b64 exec, %s" % execmask)
        k.label(name)
        for l in loads: I(l)
        I("s_waitcnt vmcnt(0)")
        regs = list(regs)
        acc = [12, 13]
        first = [True, True]
        idx = 0
        while regs:
            a_ = acc[idx & 1]
            if first[idx & 1]:
                if len(regs) >= 3:
                    I("v_max3_u32 v%d, v%d, v%d, v%d" % (a_, regs[0], regs[1], regs[2])); regs = regs[3:]
                    first[idx & 1] = False
                else:
                    a_ = acc[0]
                    I("v_max_u32 v%d, v%d, v%d" % (a_, a_, regs[0])); regs = regs[1:]
            else:
                if len(regs) >= 2:
                    I("v_max3_u32 v%d, v%d, v%d, v%d" % (a_, a_, regs[0], regs[1])); regs = regs[2:]
                else:
                    I("v_max_u32 v%d, v%d, v%d" % (a_, a_, regs[0])); regs = regs[1:]
            idx += 1
        if not first[1]: I("v_max_u32 v12, v12, v13")
        I("v_cmp_eq_u32 vcc, -1, v12")
        I("s_sub_u32 s55, s55, 1")
        I("s_cbranch_scc1 %s_out" % name)
        I("s_mov_b64 exec, vcc")
        I("s_cbranch_execnz %s" % name)
        k.label(name + "_out")
        I("s_mov_b64 exec, -1")
    AMASK = "s[70:71]"

    k.label("L_gu")
    AD = 64
    a_addr(14)
    I("s_mov_b32 s70, 0x000f000f"); I("s_mov_b32 s71, 0x000f000f")
    I("v_cmp_eq_u32 vcc, 4, v%d" % n)
    I("v_mov_b32 v15, 0x3f803f80")
    for t in range(8): I("v_cndmask_b32 v%d, 0, v15, vcc" % (AD + t))
    I("s_lshl_b32 s52, s34, 9")
    I("s_add_u32 s52, s52, %d" % HBUF)
    CSUM = 72
    I("v_and_b32 v6, 31, v0")
    I("v_lshlrev_b32 v6, 2, v6")
    I("v_add_u32 v6, %d, v6" % L_CS)
    for w in range(4):
        I("ds_read2_b32 v[%d:%d], v6 offset0:%d offset1:%d" % (32 + 2 * w, 33 + 2 * w, 64 * w, 64 * w + 32))
    I("v_and_b32 v7, 1, v0")
    I("v_lshlrev_b32 v7, 4, v7")
    I("v_bfe_u32 v8, v0, 1, 1")
    I("v_lshl_add_u32 v7, v8, 2, v7")
    I("v_bfe_u32 v8, v0, 4, 1")
    I("v_lshl_add_u32 v7, v8, 3, v7")
    I("s_lshl_b32 s53, s34, 5")
    I("v_add_u32 v7, s53, v7")
    I("v_lshlrev_b32 v8, 4, v%d" % n)
    I("s_lshl_b32 s53, s34, 9")
    I("v_add_u32 v8, s53, v8")
    I("s_waitcnt lgkmcnt(0)")
    for t in range(2):
        I("v_add_f32 v%d, v%d, v%d" % (32 + t, 32 + t, 34 + t))
        I("v_add_f32 v%d, v%d, v%d" % (36 + t, 36 + t, 38 + t))
        I("v_add_f32 v%d, v%d, v%d" % (CSUM + t, 32 + t, 36 + t))
    I("v_lshlrev_b32 v9, 2, v0")
    I("v_add_u32 v9, %d, v9" % L_GUD)
    I("v_lshrrev_b32 v10, 5, v0")
    I("v_lshlrev_b32 v10, 4, v10")
    I("v_bfe_u32 v11, v0, 3, 2")
    I("v_lshl_add_u32 v11, v11, 5, v10")
    I("v_and_b32 v3, 7, v0")
    I("v_lshl_add_u32 v11, v3, 1, v11")
    poll("L_hpoll",
         ["buffer_load_dwordx4 v[%d:%d], v14, s[36:39], s52 offen offset:%d sc1" % (AD + 4 * ds, AD + 4 * ds + 3, 256 * ds) for ds in range(2)],
         range(AD, AD + 8), AMASK)
    stamp(9)
    DG = 32
    S = 92
    for ds in range(2):
        I("v_mfma_f32_16x16x32_bf16 v[%d:%d], v[%d:%d], v[%d:%d], %s" % (S, S + 3, AD + 4 * ds, AD + 4 * ds + 3, AD + 4 * ds, AD + 4 * ds + 3, "0" if ds == 0 else "v[%d:%d]" % (S, S + 3)))
        for mat in range(2):
            for c in range(4):
                d = DG + 4 * (mat * 4 + c)
                bb = W + 16 * (ds * 2 + mat) + 4 * c
                I("v_mfma_f32_16x16x32_bf16 v[%d:%d], v[%d:%d], v[%d:%d], %s" % (d, d + 3, AD + 4 * ds, AD + 4 * ds + 3, bb, bb + 3, "0" if ds == 0 else "v[%d:%d]" % (d, d + 3)))
    I("s_mov_b64 s[72:73], 2"); I("s_mov_b64 s[74:75], 4"); I("s_mov_b64 s[76:77], 8")
    I("v_cndmask_b32 v76, v%d, v%d, s[72:73]" % (S, S + 1))
    I("v_cndmask_b32 v76, v76, v%d, s[74:75]" % (S + 2))
    I("v_cndmask_b32 v76, v76, v%d, s[76:77]" % (S + 3))
    for t in range(8):
        d = DG + 4 * t
        I("v_add_f32_dpp v%d, v%d, v%d row_ror:8 row_mask:0xf bank_mask:0x3" % (80 + t, d + 2, d + 0))
        I("v_add_f32_dpp v%d, v%d, v%d row_ror:8 row_mask:0xf bank_mask:0xc" % (80 + t, d + 1, d + 3))
    I("s_mov_b64 exec, 0x000f000f")
    I("ds_write_b32 v7, v76 offset:%d" % L_STAT)
    I("s_mov_b64 exec, 0xffff")
    I("ds_write_b128 v8, v[80:83] offset:%d" % L_GUD)
    I("ds_write_b128 v8, v[84:87] offset:%d" % (L_GUD + 256))
    I("s_mov_b64 exec, -1")
    I("s_waitcnt lgkmcnt(0)")
    I("s_barrier")
    stamp(10)
    I("s_cmp_lg_u32 s34, 0")
    I("s_cbranch_scc1 L_hend")
    for w in range(4):
        I("ds_read_b128 v[%d:%d], v10 offset:%d" % (48 + 4 * w, 51 + 4 * w, L_STAT + 32 * w))
    for w in range(4):
        I("ds_read2st64_b32 v[%d:%d], v9 offset0:%d offset1:%d" % (32 + 2 * w, 33 + 2 * w, 2 * w, 2 * w + 1))
    I("s_lshl_b32 s52, s66, 7")
    I("s_add_u32 s52, s52, %d" % HHBUF)
    I("s_waitcnt lgkmcnt(4)")
    for w in range(4):
        I("v_add_f32 v%d, v%d, v%d" % (48 + 4 * w, 48 + 4 * w, 49 + 4 * w))
        I("v_add_f32 v%d, v%d, v%d" % (50 + 4 * w, 50 + 4 * w, 51 + 4 * w))
    I("v_add_f32 v48, v48, v52"); I("v_add_f32 v50, v50, v54")
    I("v_add_f32 v56, v56, v60"); I("v_add_f32 v58, v58, v62")
    I("v_add_f32 v48, v48, v56"); I("v_add_f32 v50, v50, v58")
    I("v_mul_f32 v50, 0x3b000000, v50")
    I("v_mul_f32 v48, 0x3b000000, v48")
    I("v_fma_f32 v48, -v50, v50, v48")
    I("v_max_f32 v48, 0, v48")
    rnd(48, 48)
    I("v_add_f32 v48, 0x3727c5ac, v48")
    rnd(48, 48)
    I("v_sqrt_f32 v48, v48")
    rnd(48, 48)
    I("v_rcp_f32 v48, v48")
    rnd(50, 50)
    I("s_waitcnt lgkmcnt(0)")
    for t in range(2):
        I("v_add_f32 v%d, v%d, v%d" % (32 + t, 32 + t, 34 + t))
        I("v_add_f32 v%d, v%d, v%d" % (36 + t, 36 + t, 38 + t))
    for t in range(2):
        I("v_add_f32 v%d, v%d, v%d" % (32 + t, 32 + t, 36 + t))
    for t in range(2):
        I("v_fma_f32 v%d, -v50, v%d, v%d" % (32 + t, CSUM + t, 32 + t))
    for t in range(2):
        I("v_mul_f32 v%d, v%d, v48" % (32 + t, 32 + t))
    I("v_cvt_pk_bf16_f32 v36, v32, v33")
    I("v_lshlrev_b32 v32, 16, v36")
    I("v_and_b32 v33, 0xffff0000, v36")
    I("v_max_f32 v32, 0, v32")
    I("v_mul_f32 v32, v32, v33")
    I("v_mov_b32_dpp v33, v32 quad_perm:[1,0,3,2] row_mask:0xf bank_mask:0xf")
    I("v_cvt_pk_bf16_f32 v36, v32, v33")
    I("s_mov_b32 s63, 0x%x" % SENT_CLAMP)
    I("v_min_u32 v36, s63, v36")
    I("s_mov_b32 s70, 0x55555555"); I("s_mov_b32 s71, 0x55555555")
    I("s_mov_b64 exec, s[70:71]")
    I("buffer_store_dword v36, v11, s[36:39], s52 offen sc1")
    I("s_mov_b64 exec, -1")
    I("s_branch L_hend")

    k.label("L_down")
    I("v_lshrrev_b32 v5, 2, v0")
    I("v_lshlrev_b32 v5, 12, v5")
    I("v_bfe_u32 v6, v0, 1, 1")
    I("v_lshl_add_u32 v5, v6, 8, v5")
    I("v_and_b32 v7, 1, v0")
    I("v_lshl_add_u32 v5, v7, 4, v5")
    I("s_lshr_b32 s52, s68, 1")
    I("s_lshl_b32 s52, s52, 9")
    I("s_and_b32 s53, s68, 1")
    I("s_lshl_b32 s53, s53, 7")
    I("s_add_u32 s52, s52, s53")
    I("s_lshl_b32 s53, s34, 5")
    I("s_add_u32 s52, s52, s53")
    I("s_add_u32 s52, s52, %d" % YREC)
    I("s_add_u32 s56, s52, 65536")
    I("v_lshlrev_b32 v9, 4, v6")
    I("v_lshl_add_u32 v9, v7, 3, v9")
    I("v_lshrrev_b32 v10, 5, v0")
    I("v_lshl_add_u32 v9, v10, 2, v9")
    I("v_lshlrev_b32 v11, 6, v6")
    I("v_lshl_add_u32 v11, v7, 3, v11")
    I("v_lshl_add_u32 v11, v10, 2, v11")
    I("s_lshl_b32 s53, s34, 4")
    I("v_add_u32 v11, s53, v11")
    Y = 16
    poll("L_ypoll",
         ["buffer_load_dwordx4 v[%d:%d], v5, s[36:39], s%d offen sc1" % (Y + 4 * t, Y + 4 * t + 3, 52 if t == 0 else 56) for t in range(2)],
         range(Y, Y + 8), None)
    for t in range(4):
        I("v_add_f32 v%d, v%d, v%d" % (Y + t, Y + t, Y + 4 + t))
    I("v_permlane32_swap_b32 v%d, v%d" % (Y + 0, Y + 2))
    I("v_permlane32_swap_b32 v%d, v%d" % (Y + 1, Y + 3))
    I("v_add_f32 v%d, v%d, v%d" % (Y + 0, Y + 0, Y + 2))
    I("v_add_f32 v%d, v%d, v%d" % (Y + 1, Y + 1, Y + 3))
    I("v_permlane16_swap_b32 v%d, v%d" % (Y + 0, Y + 1))
    I("v_add_f32 v%d, v%d, v%d" % (Y + 0, Y + 0, Y + 1))
    I("v_add_f32_dpp v20, v%d, v%d row_ror:4 row_mask:0xf bank_mask:0xf" % (Y + 0, Y + 0))
    I("v_add_f32_dpp v21, v20, v20 row_ror:8 row_mask:0xf bank_mask:0xf")
    rnd(21, 21)
    I("v_add_f32 v21, v21, v15")
    I("v_mov_b32 v20, v21")
    I("v_permlane16_swap_b32 v20, v21")
    I("v_cvt_pk_bf16_f32 v22, v20, v21")
    I("s_mov_b32 s63, 0x%x" % SENT_CLAMP)
    I("v_min_u32 v22, s63, v22")
    I("s_lshl_b32 s52, s68, 2")
    I("s_add_u32 s52, s52, s34")
    I("s_lshl_b32 s52, s52, 5")
    I("s_add_u32 s52, s52, %d" % HBUF)
    I("s_mov_b32 s70, 0xf"); I("s_mov_b32 s71, 0xf")
    I("s_mov_b64 exec, s[70:71]")
    I("buffer_store_dword v22, v9, s[36:39], s52 offen sc1")
    I("ds_write_b32 v11, v22 offset:%d" % L_HB)
    I("s_mov_b64 exec, -1")
    stamp(17)
    AD = 64
    a_addr(14)
    I("s_mov_b32 s70, 0x000f000f"); I("s_mov_b32 s71, 0x000f000f")
    I("s_add_u32 s40, s26, %d" % HHBUF)
    I("s_addc_u32 s41, s27, 0")
    I("s_mov_b32 s42, 5504")
    I("s_mov_b32 s43, 0x20000")
    for t in range(24): I("v_mov_b32 v%d, 0" % (AD + t))
    for i in range(6):
        I("s_add_u32 s%d, s34, %d" % (56 + i, 4 * i))
        I("s_lshl_b32 s%d, s%d, 8" % (56 + i, 56 + i))
    I("v_lshlrev_b32 v8, 4, v%d" % n)
    I("s_lshl_b32 s53, s34, 8")
    I("v_add_u32 v8, s53, v8")
    I("v_lshlrev_b32 v9, 2, v0")
    I("v_add_u32 v9, %d, v9" % L_DP)
    I("v_lshlrev_b32 v10, 1, v0")
    I("v_lshrrev_b32 v11, 5, v0")
    I("v_lshlrev_b32 v11, 10, v11")
    I("v_and_b32 v3, 31, v0")
    I("v_lshl_add_u32 v11, v3, 1, v11")
    I("s_mov_b32 s44, s22"); I("s_mov_b32 s45, s23"); I("s_mov_b32 s46, 2048"); I("s_mov_b32 s47, 0x20000")
    poll("L_hhpoll",
         ["buffer_load_dwordx4 v[%d:%d], v14, s[40:43], s%d offen sc1" % (AD + 4 * i, AD + 4 * i + 3, 56 + i) for i in range(6)],
         range(AD, AD + 24), AMASK)
    stamp(9)
    for i in range(6):
        for c in range(4):
            d = 32 + 4 * c
            bb = W + 16 * i + 4 * c
            I("v_mfma_f32_16x16x32_bf16 v[%d:%d], v[%d:%d], v[%d:%d], %s" % (d, d + 3, AD + 4 * i, AD + 4 * i + 3, bb, bb + 3, "0" if i == 0 else "v[%d:%d]" % (d, d + 3)))
    for c in range(4):
        d = 32 + 4 * c
        I("v_add_f32_dpp v%d, v%d, v%d row_ror:8 row_mask:0xf bank_mask:0x3" % (48 + c, d + 2, d + 0))
        I("v_add_f32_dpp v%d, v%d, v%d row_ror:8 row_mask:0xf bank_mask:0xc" % (48 + c, d + 1, d + 3))
    I("s_mov_b64 exec, 0xffff")
    I("ds_write_b128 v8, v[48:51] offset:%d" % L_DP)
    I("s_mov_b64 exec, -1")
    I("s_waitcnt lgkmcnt(0)")
    I("s_barrier")
    stamp(10)
    I("s_cmp_lg_u32 s34, 0")
    I("s_cbranch_scc1 L_hend")
    for w in range(2):
        I("ds_read2st64_b32 v[%d:%d], v9 offset0:%d offset1:%d" % (32 + 2 * w, 33 + 2 * w, 2 * w, 2 * w + 1))
    I("ds_read_u16 v40, v10 offset:%d" % L_HB)
    I("s_lshl_b32 s52, s68, 6")
    I("s_waitcnt lgkmcnt(0)")
    I("v_add_f32 v32, v32, v33")
    I("v_add_f32 v34, v34, v35")
    I("v_add_f32 v32, v32, v34")
    rnd(32, 32)
    I("v_lshlrev_b32 v35, 16, v40")
    I("v_add_f32 v32, v32, v35")
    I("v_mov_b32_dpp v33, v32 quad_perm:[1,0,3,2] row_mask:0xf bank_mask:0xf")
    I("v_cvt_pk_bf16_f32 v34, v32, v33")
    I("s_mov_b32 s70, 0x55555555"); I("s_mov_b32 s71, 0x55555555")
    I("s_mov_b64 exec, s[70:71]")
    I("buffer_store_dword v34, v11, s[44:47], s52 offen")
    I("s_cmp_lg_u32 s68, 0")
    I("s_cbranch_scc1 L_noepoch")
    I("v_mov_b32 v35, s35")
    I("s_mov_b64 exec, 1")
    I("buffer_store_dword v35, off, s[36:39], 0 offset:%d sc1" % EPOCH)
    k.label("L_noepoch")
    I("s_mov_b64 exec, -1")
    k.label("L_hend")
    stamp(11)
    stamp_flush(True)
    k.label("L_end")
    I("s_endpgm")

    body = k.finish()
    for p in k.problems: print("HAZARD-EDGE:", p)
    nv = 256
    out = [HEADER.rstrip()]
    out.append("; Override launch geometry by editing the next line (default: block=256,")
    out.append("; @launch grid=(256,1,1) block=(512,1,1) lds=%d" % LDS_BYTES)
    out.append('.amdgcn_target "amdgcn-amd-amdhsa--gfx950"')
    out.append(".text")
    out.append(".globl %s" % KNAME)
    out.append(".p2align 8")
    out.append(".type %s,@function" % KNAME)
    out.append("%s:" % KNAME)
    for ln in body:
        out.append(ln if ln.endswith(":") else "    " + ln)
    out.append('.section .rodata,"a"')
    out.append(".p2align 6")
    out.append(".amdhsa_kernel %s" % KNAME)
    out.append("  .amdhsa_next_free_vgpr %d" % nv)
    out.append("  .amdhsa_next_free_sgpr 102")
    out.append("  .amdhsa_accum_offset %d" % nv)
    out.append("  .amdhsa_group_segment_fixed_size 0")
    out.append("  .amdhsa_kernarg_size 96")
    out.append("  .amdhsa_user_sgpr_count 2")
    out.append("  .amdhsa_user_sgpr_kernarg_segment_ptr 1")
    out.append("  .amdhsa_system_sgpr_workgroup_id_x 1")
    out.append(".end_amdhsa_kernel")
    open(path, "w").write("\n".join(out) + "\n")

if __name__ == "__main__":
    import argparse
    ap = argparse.ArgumentParser()
    ap.add_argument("out")
    ap.add_argument("--stamps", action="store_true")
    ap.add_argument("--NS", type=int, default=26)
    ap.add_argument("--NPARK", type=int, default=2)
    ap.add_argument("--nopref", action="store_true")
    ap.add_argument("--nocomp", action="store_true")
    ap.add_argument("--prio", type=int, default=0)
    ap.add_argument("--prio2", type=int, default=0)
    ap.add_argument("--xf", type=int, default=None)
    ap.add_argument("--wqcap", type=int, default=32)
    ap.add_argument("--XG", type=int, default=6)
    ap.add_argument("--warm", action="store_true")
    ap.add_argument("--contig", action="store_true")
    ap.add_argument("--SL0", type=int, default=22)
    ap.add_argument("--SL1", type=int, default=22)
    ap.add_argument("--NPOLL", type=int, default=3)
    ap.add_argument("--warmnt", action="store_true")
    ap.add_argument("--CAP", type=int, default=34)
    ap.add_argument("--b0", action="store_true")
    ap.add_argument("--rot", type=int, default=0)
    ap.add_argument("--tl", action="store_true")
    ap.add_argument("--RD", type=int, default=2)
    ap.add_argument("--xp", default=None)
    ap.add_argument("--dbgst", action="store_true")
    ap.add_argument("--ntq", action="store_true")
    ap.add_argument("--nto", action="store_true")
    ap.add_argument("--ntf", action="store_true")
    a = ap.parse_args()
    gen(a.out, contig=a.contig, NS=a.NS, CAP=a.CAP, stamps=a.stamps, b0=a.b0, NPARK=a.NPARK, nopref=a.nopref, nocomp=a.nocomp, prio=a.prio, prio2=a.prio2, xf=a.xf, wqcap=a.wqcap, XG=a.XG, warm=a.warm, warmnt=a.warmnt, SL0=a.SL0, SL1=a.SL1, NPOLL=a.NPOLL, rot=a.rot, tl=a.tl, RD=a.RD, ntq=a.ntq, nto=a.nto, ntf=a.ntf, xp=a.xp, dbgst=a.dbgst)
```

```python
import sys
from asmlib import K

KNAME = "sequential_preLN__gqa_block_cached__glu_gated_reglu__decode_kernel"
REF = "sequential_preLN__gqa_block_cached__glu_gated_reglu__decode.s.ref"
HEADER = open(REF).read().split("; Override")[0]

EPOCH = 0
CNT = 0x1000
QG = 0x10000
OREC = 0x90000
YREC = 0xD0000
GUREC = 0x100000
DREC = 0x1B0000
DBG = 0x200000
WSREC = 0x300000
L_Q = 0x000
L_FLAG = 0x100
L_GO = 0x104
L_MLP = 0x120
L_PART = 0x200
L_YP = 0xA00
L_HACC = 0x1200
L_GACC = 0x1300
L_SACC = 0x1600
L_FACC = 0x1700
L_HB = 0x1800
L_HH = 0x1900
LDS_BYTES = 0x2000

SENT_CLAMP = 0xFFFFFFFE
SPIN = 1 << 14

def gen(path, contig=False, NS=26, CAP=34, stamps=False, NPARK=2, XP=(2, 6, 10, 14), b0=False, nopref=False, nocomp=False, prio=0, prio2=0, xf=None, wqcap=32, XG=6, warm=False, warmnt=False, SL0=22, SL1=22, NPOLL=3, rot=0, tl=False, RD=2, ntq=False, nto=False, ntf=False, xp=None, dbgst=False, pp=1, psl=6, ppo=1, hrep=1, hhrep=1, pdiff=False, tlbw=0):
    NFILL = NPARK + RD
    XF = ((NS - NFILL - RD - 2) // RD) * RD
    if RD != 2: XP = tuple(RD * (1 + 2 * i) if RD == 2 else RD * (1 + i) for i in range(4))
    assert XG % RD == 0
    if xf is not None: XF = xf
    if xp is not None: XP = tuple(int(x) for x in xp.split(','))
    assert NPARK == 0 or max(XP[:NPARK]) < NS - NPARK - RD
    assert XF >= 0
    k = K()
    I = k.I
    vST = 250
    nst = [0]
    def stamp(idx):
        if not stamps: return
        I("s_memrealtime s[98:99]")
        I("s_waitcnt lgkmcnt(0)")
        I("v_writelane_b32 v%d, s98, %d" % (vST, idx))
    apend = []
    def astamp(idx):
        if not stamps: return
        r = 78 + 2 * len(apend)
        assert r <= 96
        I("s_memrealtime s[%d:%d]" % (r, r + 1))
        apend.append((idx, r))
    def acollect(keep=0):
        if not stamps: return
        I("s_waitcnt lgkmcnt(0)")
        for idx, r in apend: I("v_writelane_b32 v%d, s%d, %d" % (vST, r, idx))
        del apend[keep:]
    def stamp_flush(helper=False):
        if not stamps: return
        if dbgst:
            I("s_mov_b64 exec, -1")
            va, vd = vST + 2, vST + 3
            I("v_mov_b32 v%d, 0x1000" % va)
            I("v_mov_b32 v%d, v%d" % (vd, vST))
            I("s_nop 4")
            mp = {3: 5, 5: 6, 6: 7, 8: 8, 17: 9, 9: 10, 10: 11, 11: 12, 13: 13, 4: 14} if helper else {1: 1, 2: 2, 3: 3, 4: 4, 0: 15}
            for lane, w in mp.items():
                I("s_mov_b32 s98, %d" % (4 * w))
                I("v_writelane_b32 v%d, s98, %d" % (va, lane))
            if not helper:
                I("v_readlane_b32 s98, v%d, 0" % vST)
                I("s_not_b32 s98, s98")
                I("v_writelane_b32 v%d, s98, 0" % vd)
            I("s_mov_b32 s92, s24"); I("s_mov_b32 s93, s25"); I("s_mov_b32 s94, 256"); I("s_mov_b32 s95, 0x20000")
            I("buffer_atomic_umax v%d, v%d, s[92:95], 0 offen sc1" % (vd, va))
        I("s_mov_b64 exec, -1")
        I("s_getreg_b32 s98, hwreg(HW_REG_XCC_ID)")
        I("v_writelane_b32 v%d, s98, 63" % vST)
        I("s_lshl_b32 s98, s2, 3")
        I("s_add_u32 s98, s98, s28")
        I("s_lshl_b32 s98, s98, 8")
        I("s_add_u32 s98, s98, %d" % DBG)
        I("v_lshlrev_b32 v%d, 2, v0" % (vST + 1))
        I("buffer_store_dword v%d, v%d, s[36:39], s98 offen" % (vST, vST + 1))
        if tl:
            I("s_add_u32 s98, s98, 0x80000")
            I("buffer_store_dword v%d, v%d, s[36:39], s98 offen" % (vST - 1, vST + 1))

    def rnd(dst, src):
        I("v_cvt_pk_bf16_f32 v%d, v%d, v%d" % (dst, src, src))
        I("v_and_b32 v%d, 0xffff0000, v%d" % (dst, dst))

    def swap_reduce(op, v, t):
        I("v_mov_b32 v%d, v%d" % (t, v))
        I("v_permlane16_swap_b32 v%d, v%d" % (t, v))
        I("%s v%d, v%d, v%d" % (op, v, v, t))
        I("v_mov_b32 v%d, v%d" % (t, v))
        I("v_permlane32_swap_b32 v%d, v%d" % (t, v))
        I("%s v%d, v%d, v%d" % (op, v, v, t))

    I("s_cmp_ge_u32 s2, 256")
    I("s_cbranch_scc1 L_end")
    I("s_load_dwordx16 s[4:19], s[0:1], 0")
    if not tlbw: I("s_load_dwordx8 s[20:27], s[0:1], 64")
    if tlbw:
        I("s_lshr_b32 s29, s2, 3")
        I("s_bfe_u32 s31, s2, 0x10001")
        I("s_lshl_b32 s33, s31, 5")
        I("s_add_u32 s33, s33, s29")
        I("s_lshl_b32 s52, s33, 21")
        I("v_mov_b32 v2, s52")
        if stamps:
            I("s_memrealtime s[78:79]")
        I("s_waitcnt lgkmcnt(0)")
        I("s_mov_b64 exec, 1")
        I("global_load_dword v254, v2, s[6:7]")
        I("global_load_dword v255, v2, s[8:9]")
        I("s_mov_b64 exec, -1")
        if tlbw == 2:
            I("s_memrealtime s[96:97]")
            I("s_waitcnt vmcnt(1)")
            I("s_memrealtime s[94:95]")
            I("s_waitcnt vmcnt(0)")
            I("s_memrealtime s[92:93]")
        I("s_load_dwordx8 s[20:27], s[0:1], 64")
    I("v_lshrrev_b32 v1, 6, v0")
    I("v_and_b32 v0, 63, v0")
    I("v_readfirstlane_b32 s28, v1")
    if not tlbw: I("s_lshr_b32 s29, s2, 3")
    I("s_and_b32 s30, s2, 7")
    if not tlbw: I("s_bfe_u32 s31, s2, 0x10001")
    I("s_bfe_u32 s32, s2, 0x10002")
    I("s_lshl_b32 s32, s32, 1")
    I("s_and_b32 s34, s2, 1")
    I("s_or_b32 s32, s32, s34")
    if not tlbw:
        I("s_lshl_b32 s33, s31, 5")
        I("s_add_u32 s33, s33, s29")
    if stamps:
        I("v_mov_b32 v%d, 0" % vST)
        if tl: I("v_mov_b32 v%d, 0" % (vST - 1))
        if not tlbw: I("s_memrealtime s[78:79]")
    I("s_waitcnt lgkmcnt(0)")
    if stamps:
        if tlbw == 2:
            I("v_writelane_b32 v%d, s96, 40" % vST)
            I("v_writelane_b32 v%d, s94, 41" % vST)
            I("v_writelane_b32 v%d, s92, 42" % vST)
        I("v_writelane_b32 v%d, s78, 0" % vST)
        astamp(12)
    I("s_mov_b32 s36, s26")
    I("s_mov_b32 s37, s27")
    I("s_mov_b32 s38, %d" % WSREC)
    I("s_mov_b32 s39, 0x20000")
    I("s_cmp_ge_u32 s28, 4")
    I("s_cbranch_scc1 L_helper")

    vOff = 1; vQ = 2; vAcc = 6; vM = 14; vL = 15
    a = [16, 17, 18, 19]; u0 = 20; u1 = 21; vw = 22; vt = 23; vsc = 24; vmx = 25; vmn = 26; vp = 27; val = 28
    vplo = 29; vphi = 30; vT = [31, 32, 34, 35]; vCA = 33
    RING = [36 + 32 * i for i in range(RD)]
    sVAL = [55, 56, 70, 71]
    P0 = 36 + 32 * RD
    PK = [P0 + 32 * i for i in range(NPARK)]
    assert P0 + 32 * max(NPARK, 1) <= 248
    I("v_lshlrev_b32 v%d, 4, v0" % vOff)
    I("s_lshl_b32 s52, s33, 21")
    I("s_add_u32 s40, s6, s52")
    I("s_addc_u32 s41, s7, 0")
    I("s_mov_b32 s42, 0x200000")
    I("s_mov_b32 s43, 0x20000")
    I("s_add_u32 s44, s8, s52")
    I("s_addc_u32 s45, s9, 0")
    I("s_mov_b32 s46, 0x200000")
    I("s_mov_b32 s47, 0x20000")
    I("s_mov_b32 s48, s26")
    I("s_mov_b32 s49, s27")
    I("s_mov_b32 s50, 0")
    I("s_mov_b32 s51, 0x20000")
    if contig:
        I("s_mul_i32 s60, s32, %d" % (4 * NS))
    else:
        I("s_lshl_b32 s60, s32, 2")
    I("s_add_u32 s60, s60, s28")
    USH = 2 if contig else 4
    if rot:
        I("s_mul_i32 s58, s33, %d" % rot)
    def rotate():
        if rot:
            I("s_add_u32 s52, s52, s58")
            I("s_and_b32 s52, s52, 511")
    I("s_lshl_b32 s61, s33, 8")
    I("s_add_u32 s61, s61, %d" % CNT)
    I("v_mov_b32 v%d, s61" % vCA)
    if b0: I("s_barrier")
    outstanding = [0]
    def paced():
        if outstanding[0] >= CAP:
            I("s_waitcnt vmcnt(%d)" % (CAP - 1))
            outstanding[0] = CAP - 1
        outstanding[0] += 1
    def ld(base, kv, j, soff="s52"):
        r = base + 16 * kv + 4 * j
        I("buffer_load_dwordx4 v[%d:%d], v%d, %s, %s offen offset:%d nt" % (r, r + 3, vOff, "s[40:43]" if kv == 0 else "s[44:47]", soff, 1024 * j))
    def issue_atomic(slot):
        I("s_cmp_lt_u32 s54, %d" % NS)
        I("s_cselect_b32 s50, 0, %d" % WSREC)
        I("v_mov_b32 v%d, 1" % vT[slot])
        I("s_mov_b64 exec, 1")
        I("buffer_atomic_add v%d, v%d, s[48:51], 0 offen sc0 sc1" % (vT[slot], vCA))
        I("s_mov_b64 exec, -1")
        I("s_add_u32 s54, s54, 1")
    for ci, base in enumerate(PK + RING):
        I("s_add_u32 s52, s60, %d" % (ci << USH))
        rotate()
        I("s_lshl_b32 s52, s52, 12")
        if ci == NPARK: I("s_mov_b32 s54, %d" % NFILL)
        if ci >= NPARK:
            paced(); issue_atomic(ci - NPARK)
        for kv in range(2):
            for j in range(4):
                paced(); ld(base, kv, j)
        if ci < 6: astamp(27 + ci)
    I("s_mov_b32 s53, %d" % NFILL)
    for i in range(RD): I("s_mov_b32 s%d, 1" % sVAL[i])
    I("s_mov_b32 s57, 0")
    for i in range(8): I("v_mov_b32 v%d, 0" % (vAcc + i))
    I("v_mov_b32 v%d, 0xf149f2ca" % vM)
    I("v_mov_b32 v%d, 0" % vL)
    acollect(keep=1)
    stamp(1)
    I("s_barrier")
    I("v_and_b32 v%d, 15, v0" % vt)
    I("v_lshlrev_b32 v%d, 4, v%d" % (vt, vt))
    I("ds_read_b128 v[%d:%d], v%d offset:%d" % (vQ, vQ + 3, vt, L_Q))
    I("s_waitcnt lgkmcnt(0)")
    stamp(2)

    def consume(base, wait=None, reload=None):
        if nocomp:
            for kv in range(2):
                for j in range(4):
                    if wait: wait(kv, j)
                    r = base + 16 * kv + 4 * j
                    I("v_xor_b32 v%d, v%d, v%d" % (vAcc + j, r, vAcc + j))
                    if reload: reload(kv, j)
            return
        for j in range(4):
            if wait: wait(0, j)
            r = base + 4 * j
            I("v_dot2_f32_bf16 v%d, v%d, v%d, 0" % (a[j], r, vQ))
            for t in range(1, 4):
                I("v_dot2_f32_bf16 v%d, v%d, v%d, v%d" % (a[j], r + t, vQ + t, a[j]))
            if reload: reload(0, j)
        I("v_add_f32_dpp v%d, v%d, v%d row_ror:8 row_mask:0xf bank_mask:0x3" % (u0, a[0], a[0]))
        I("v_add_f32_dpp v%d, v%d, v%d row_ror:8 row_mask:0xf bank_mask:0xc" % (u0, a[2], a[2]))
        I("v_add_f32_dpp v%d, v%d, v%d row_ror:8 row_mask:0xf bank_mask:0x3" % (u1, a[1], a[1]))
        I("v_add_f32_dpp v%d, v%d, v%d row_ror:8 row_mask:0xf bank_mask:0xc" % (u1, a[3], a[3]))
        I("v_add_f32_dpp v%d, v%d, v%d row_half_mirror row_mask:0xf bank_mask:0x5" % (vw, u0, u0))
        I("v_add_f32_dpp v%d, v%d, v%d row_half_mirror row_mask:0xf bank_mask:0xa" % (vw, u1, u1))
        I("v_add_f32_dpp v%d, v%d, v%d quad_perm:[1,0,3,2] row_mask:0xf bank_mask:0xf" % (vt, vw, vw))
        I("v_add_f32_dpp v%d, v%d, v%d quad_perm:[2,3,0,1] row_mask:0xf bank_mask:0xf" % (vw, vt, vt))
        rnd(vw, vw)
        I("v_mul_f32 v%d, 0x3db504f3, v%d" % (vw, vw))
        rnd(vw, vw)
        I("v_mul_f32 v%d, 0x3fb8aa3b, v%d" % (vsc, vw))
        I("v_max_f32_dpp v%d, v%d, v%d row_ror:4 row_mask:0xf bank_mask:0xf" % (vmx, vsc, vsc))
        I("v_max_f32_dpp v%d, v%d, v%d row_ror:8 row_mask:0xf bank_mask:0xf" % (vmn, vmx, vmx))
        I("v_max_f32 v%d, v%d, v%d" % (vmn, vmn, vM))
        I("v_sub_f32 v%d, v%d, v%d" % (vp, vsc, vmn))
        I("v_sub_f32 v%d, v%d, v%d" % (val, vM, vmn))
        I("v_exp_f32 v%d, v%d" % (vp, vp))
        I("v_exp_f32 v%d, v%d" % (val, val))
        I("v_mov_b32 v%d, v%d" % (vM, vmn))
        I("v_cvt_pk_bf16_f32 v%d, v%d, 0" % (vplo, vp))
        I("v_lshlrev_b32 v%d, 16, v%d" % (vphi, vplo))
        I("v_fma_f32 v%d, v%d, v%d, v%d" % (vL, vL, val, vphi))
        for i in range(8):
            I("v_mul_f32 v%d, v%d, v%d" % (vAcc + i, vAcc + i, val))
        for j in range(4):
            if wait: wait(1, j)
            r = base + 16 + 4 * j
            for t in range(4):
                I("v_dot2c_f32_bf16_dpp v%d, v%d, v%d row_newbcast:%d row_mask:0xf bank_mask:0xf" % (vAcc + 2 * t, vplo, r + t, 4 * j))
                I("v_dot2c_f32_bf16_dpp v%d, v%d, v%d row_newbcast:%d row_mask:0xf bank_mask:0xf" % (vAcc + 2 * t + 1, vphi, r + t, 4 * j))
            if reload: reload(1, j)

    k.label("L_loop")
    for slot, base in enumerate(RING):
        if slot == 0:
            if stamps:
                I("s_and_b32 s62, s57, 7")
                I("s_cmp_lg_u32 s62, 0")
                I("s_cbranch_scc1 L_nost")
                I("s_memrealtime s[98:99]")
                I("s_lshr_b32 s62, s57, 3")
                I("s_add_u32 m0, s62, 20")
                I("s_waitcnt lgkmcnt(0)")
                I("s_nop 1")
                I("v_writelane_b32 v%d, s98, m0" % vST)
                k.label("L_nost")
            for pi in range(NPARK):
                I("s_cmp_eq_u32 s57, %d" % XP[pi])
                I("s_cbranch_scc1 L_park%d" % pi)
                k.label("L_park%d_ret" % pi)
            I("s_cmp_eq_u32 s57, %d" % XF)
            I("s_cbranch_scc1 L_flag")
            k.label("L_flag_ret")
            I("s_cmp_eq_u32 s57, %d" % XG)
            I("s_cbranch_scc1 L_go")
            k.label("L_go_ret")
        I("s_cmp_eq_u32 s%d, 0" % sVAL[slot])
        I("s_cbranch_scc1 L_fin")
        I("s_waitcnt vmcnt(%d)" % (9 * RD - 2))
        I("v_readfirstlane_b32 s52, v%d" % vT[slot])
        I("s_lshl_b32 s62, s53, %d" % USH)
        I("s_add_u32 s62, s62, s60")
        I("s_add_u32 s52, s52, %d" % (NS * 16))
        I("s_cmp_lt_u32 s53, %d" % NS)
        I("s_cselect_b32 s52, s62, s52")
        I("s_add_u32 s53, s53, 1")
        I("s_cmp_lt_u32 s52, 512")
        I("s_cselect_b32 s42, 0x200000, 0")
        I("s_cselect_b32 s46, 0x200000, 0")
        I("s_cselect_b32 s%d, 1, 0" % sVAL[slot])
        rotate()
        I("s_lshl_b32 s52, s52, 12")
        issue_atomic(slot)
        def wait(kv, j):
            if not (kv == 0 and j == 0):
                I("s_waitcnt vmcnt(%d)" % (9 * RD - 1))
        consume(base, wait, lambda kv, j, base=base: ld(base, kv, j))
        if tl:
            I("s_memrealtime s[98:99]")
            I("s_mov_b32 m0, s57")
            I("s_waitcnt lgkmcnt(0)")
            I("v_writelane_b32 v%d, s98, m0" % (vST - 1))
        I("s_add_u32 s57, s57, 1")
    I("s_branch L_loop")
    for pi in range(NPARK):
        k.label("L_park%d" % pi)
        if pi == 1: stamp(25)
        consume(PK[pi])
        if pi == 1: stamp(26)
        I("s_branch L_park%d_ret" % pi)
    k.label("L_go")
    I("v_mov_b32 v%d, %d" % (vt, L_GO))
    I("v_mov_b32 v%d, 1" % vw)
    I("ds_write_b32 v%d, v%d" % (vt, vw))
    I("s_branch L_go_ret")
    k.label("L_flag")
    I("s_mov_b32 s62, %d" % SPIN)
    I("v_mov_b32 v%d, %d" % (vt, L_FLAG))
    k.label("L_flagspin")
    I("ds_read_b32 v%d, v%d" % (vw, vt))
    I("s_waitcnt lgkmcnt(0)")
    I("v_readfirstlane_b32 s63, v%d" % vw)
    I("s_cmp_eq_u32 s63, 1")
    I("s_cbranch_scc1 L_flag_ret")
    I("s_sleep 8")
    I("s_sub_u32 s62, s62, 1")
    I("s_cbranch_scc0 L_flagspin")
    I("s_branch L_flag_ret")

    k.label("L_fin")
    stamp(3)
    I("v_add_f32_dpp v%d, v%d, v%d row_ror:4 row_mask:0xf bank_mask:0xf" % (vt, vL, vL))
    I("v_mov_b32 v%d, v%d" % (vmn, vM))
    I("v_add_f32_dpp v%d, v%d, v%d row_ror:8 row_mask:0xf bank_mask:0xf" % (vL, vt, vt))
    swap_reduce("v_max_f32", vmn, vt)
    I("v_sub_f32 v%d, v%d, v%d" % (val, vM, vmn))
    I("v_exp_f32 v%d, v%d" % (val, val))
    I("v_mul_f32 v%d, v%d, v%d" % (vL, vL, val))
    for i in range(8):
        I("v_mul_f32 v%d, v%d, v%d" % (vAcc + i, vAcc + i, val))
    swap_reduce("v_add_f32", vL, vt)
    for i in range(4):
        I("v_permlane32_swap_b32 v%d, v%d" % (vAcc + i, vAcc + i + 4))
    for i in range(4):
        I("v_add_f32 v%d, v%d, v%d" % (vAcc + i, vAcc + i, vAcc + i + 4))
    I("v_permlane16_swap_b32 v%d, v%d" % (vAcc + 0, vAcc + 2))
    I("v_permlane16_swap_b32 v%d, v%d" % (vAcc + 1, vAcc + 3))
    I("v_add_f32 v%d, v%d, v%d" % (vAcc + 0, vAcc + 0, vAcc + 2))
    I("v_add_f32 v%d, v%d, v%d" % (vAcc + 1, vAcc + 1, vAcc + 3))
    I("v_and_b32 v%d, 15, v0" % vt)
    I("v_lshrrev_b32 v%d, 4, v0" % vw)
    I("v_lshlrev_b32 v%d, 5, v%d" % (vt, vt))
    I("v_lshl_add_u32 v%d, v%d, 3, v%d" % (vt, vw, vt))
    I("s_lshl_b32 s62, s28, 9")
    I("v_add_u32 v%d, s62, v%d" % (vt, vt))
    I("ds_write_b64 v%d, v[%d:%d] offset:%d" % (vt, vAcc, vAcc + 1, L_PART))
    I("v_mov_b32 v%d, v%d" % (vM, vmn))
    I("s_lshl_b32 s62, s28, 3")
    I("v_mov_b32 v%d, s62" % vt)
    I("s_mov_b64 exec, 1")
    I("ds_write_b64 v%d, v[%d:%d] offset:%d" % (vt, vM, vL, L_MLP))
    I("s_mov_b64 exec, -1")
    I("s_waitcnt lgkmcnt(0)")
    I("s_barrier")
    I("s_cmp_lg_u32 s28, 0")
    I("s_cbranch_scc1 L_sdone")
    Z = P0
    I("v_mov_b32 v20, 0")
    I("v_lshlrev_b32 v21, 3, v0")
    I("ds_read_b128 v[%d:%d], v20 offset:%d" % (Z, Z + 3, L_MLP))
    I("ds_read_b128 v[%d:%d], v20 offset:%d" % (Z + 4, Z + 7, L_MLP + 16))
    for w in range(4):
        I("ds_read_b64 v[%d:%d], v21 offset:%d" % (Z + 8 + 2 * w, Z + 9 + 2 * w, L_PART + 512 * w))
    I("s_lshl_b32 s62, s2, 10")
    I("s_add_u32 s62, s62, %d" % OREC)
    I("s_waitcnt lgkmcnt(4)")
    MM = Z + 16; LL = Z + 17; O0 = Z + 18; O1 = Z + 19
    I("v_max_f32 v%d, v%d, v%d" % (MM, Z, Z + 2))
    I("v_max3_f32 v%d, v%d, v%d, v%d" % (MM, MM, Z + 4, Z + 6))
    for w in range(4):
        I("v_sub_f32 v%d, v%d, v%d" % (Z + 2 * w, Z + 2 * w, MM))
    for w in range(4):
        I("v_exp_f32 v%d, v%d" % (Z + 2 * w, Z + 2 * w))
    I("v_mul_f32 v%d, v%d, v%d" % (LL, Z, Z + 1))
    for w in range(1, 4):
        I("v_fmac_f32 v%d, v%d, v%d" % (LL, Z + 2 * w, Z + 2 * w + 1))
    I("s_waitcnt lgkmcnt(0)")
    I("v_mul_f32 v%d, v%d, v%d" % (O0, Z, Z + 8))
    I("v_mul_f32 v%d, v%d, v%d" % (O1, Z, Z + 9))
    for w in range(1, 4):
        I("v_fmac_f32 v%d, v%d, v%d" % (O0, Z + 2 * w, Z + 8 + 2 * w))
        I("v_fmac_f32 v%d, v%d, v%d" % (O1, Z + 2 * w, Z + 9 + 2 * w))
    I("s_mov_b32 s63, 0x%x" % SENT_CLAMP)
    for r in (MM, LL, O0, O1):
        I("v_min_u32 v%d, s63, v%d" % (r, r))
    I("buffer_store_dwordx2 v[%d:%d], v21, s[36:39], s62 offen sc1" % (O0, O1))
    I("s_mov_b64 exec, 1")
    I("buffer_store_dwordx2 v[%d:%d], v20, s[36:39], s62 offen offset:512 sc1" % (MM, LL))
    I("s_mov_b64 exec, -1")
    stamp(4)
    k.label("L_sdone")
    stamp_flush()
    I("s_endpgm")

    k.label("L_helper")
    if prio: I("s_setprio %d" % prio)
    I("s_sub_u32 s34, s28, 4")
    I("s_lshr_b32 s69, s29, 1")
    I("s_sub_u32 s69, s32, s69")
    I("s_and_b32 s69, s69, 3")
    I("s_lshl_b32 s69, s69, 6")
    I("s_add_u32 s69, s69, s33")
    I("s_and_b32 s68, s69, 15")
    I("s_lshr_b32 s66, s69, 4")
    I("s_sub_u32 s52, s69, 176")
    I("s_sub_u32 s53, s69, 197")
    I("s_sub_u32 s54, s69, 213")
    I("s_cmp_lt_u32 s54, 27")
    I("s_cselect_b32 s67, 2, 0")
    I("s_cmp_lt_u32 s52, 16")
    I("s_cselect_b32 s67, 2, s67")
    I("s_cselect_b32 s53, s52, s53")
    I("s_cmp_lt_u32 s69, 176")
    I("s_cselect_b32 s67, 1, s67")
    I("s_cselect_b32 s66, s66, s53")
    g = 1; n = 2
    I("v_lshrrev_b32 v%d, 4, v0" % g)
    I("v_and_b32 v%d, 15, v0" % n)
    I("s_mov_b32 s44, s10"); I("s_mov_b32 s45, s11"); I("s_mov_b32 s46, 0x400000"); I("s_mov_b32 s47, 0x20000")
    I("s_mov_b32 s40, s4"); I("s_mov_b32 s41, s5"); I("s_mov_b32 s42, 2048"); I("s_mov_b32 s43, 0x20000")
    I("v_lshrrev_b32 v3, 3, v%d" % n)
    I("v_lshlrev_b32 v4, 2, v3")
    I("v_add_u32 v4, v4, v%d" % g)
    I("v_lshlrev_b32 v5, 16, v4")
    I("v_and_b32 v6, 7, v%d" % n)
    I("v_lshl_add_u32 v5, v6, 3, v5")
    I("s_lshl_b32 s52, s30, 19")
    I("s_lshl_b32 s53, s29, 8")
    I("s_add_u32 s52, s52, s53")
    I("s_lshl_b32 s53, s34, 6")
    I("s_add_u32 s52, s52, s53")
    R = 16
    for j in range(8):
        I("buffer_load_dwordx2 v[%d:%d], v5, s[44:47], s52 offen%s" % (R + 2 * j, R + 2 * j + 1, " nt" if ntq else ""))
        if j < 7: I("s_add_u32 s52, s52, 8192")
    astamp(15)
    XFULL = 48
    I("v_and_b32 v7, 1, v0")
    I("v_lshlrev_b32 v7, 10, v7")
    I("v_lshrrev_b32 v8, 1, v0")
    I("v_lshl_add_u32 v8, v8, 5, v7")
    I("buffer_load_dwordx4 v[%d:%d], v8, s[40:43], 0 offen" % (XFULL, XFULL + 3))
    I("buffer_load_dwordx4 v[%d:%d], v8, s[40:43], 0 offen offset:16" % (XFULL + 4, XFULL + 7))
    XA = 56
    I("v_bfe_u32 v9, v%d, 1, 1" % n)
    I("v_lshlrev_b32 v9, 2, v9")
    I("v_add_u32 v9, v9, v%d" % g)
    I("v_lshl_add_u32 v9, v9, 4, v7")
    I("s_lshl_b32 s53, s30, 7")
    I("buffer_load_dwordx4 v[%d:%d], v9, s[40:43], s53 offen" % (XA, XA + 3))
    I("s_load_dword s35, s[26:27], %d" % EPOCH)
    if b0: I("s_barrier")
    I("v_mov_b32 v14, 0")
    I("v_mov_b32 v15, 0")
    I("v_mov_b32 v12, %d" % L_FLAG)
    I("ds_write_b64 v12, v[14:15]")
    I("v_lshlrev_b32 v12, 3, v0")
    I("s_lshl_b32 s52, s34, 9")
    I("v_add_u32 v12, s52, v12")
    I("ds_write_b64 v12, v[14:15] offset:%d" % L_HACC)
    I("s_mov_b32 s64, 0x05040100")
    I("s_mov_b32 s65, 0x07060302")
    astamp(1)
    F = 64
    I("s_waitcnt vmcnt(1)")
    astamp(14)
    for t in range(8):
        I("v_lshlrev_b32 v%d, 16, v%d" % (F + 2 * t, XFULL + t))
        I("v_and_b32 v%d, 0xffff0000, v%d" % (F + 2 * t + 1, XFULL + t))
    def lane_par_reduce(v, t):
        I("v_add_f32_dpp v%d, v%d, v%d row_ror:2 row_mask:0xf bank_mask:0xf" % (t, v, v))
        I("v_add_f32_dpp v%d, v%d, v%d row_ror:4 row_mask:0xf bank_mask:0xf" % (v, t, t))
        I("v_add_f32_dpp v%d, v%d, v%d row_ror:8 row_mask:0xf bank_mask:0xf" % (t, v, v))
        I("v_mov_b32 v%d, v%d" % (v, t))
        swap_reduce("v_add_f32", v, t)
    I("v_add_f32 v12, v%d, v%d" % (F, F + 1))
    I("v_add_f32 v13, v%d, v%d" % (F + 2, F + 3))
    for t in range(4, 16, 2):
        I("v_add_f32 v12, v12, v%d" % (F + t))
        I("v_add_f32 v13, v13, v%d" % (F + t + 1))
    I("v_add_f32 v12, v12, v13")
    lane_par_reduce(12, 13)
    I("v_mul_f32 v12, 0x3b000000, v12")
    I("v_mov_b32 v14, 0")
    I("v_mov_b32 v15, 0")
    for t in range(16):
        I("v_sub_f32 v%d, v%d, v12" % (F + t, F + t))
    for t in range(0, 16, 2):
        I("v_fmac_f32 v14, v%d, v%d" % (F + t, F + t))
        I("v_fmac_f32 v15, v%d, v%d" % (F + t + 1, F + t + 1))
    I("v_add_f32 v14, v14, v15")
    lane_par_reduce(14, 13)
    I("v_mul_f32 v14, 0x3b000000, v14")
    rnd(14, 14)
    I("v_add_f32 v14, 0x3727c5ac, v14")
    rnd(14, 14)
    I("v_sqrt_f32 v14, v14")
    rnd(14, 14)
    I("v_rcp_f32 v14, v14")
    rnd(12, 12)
    A = 60
    I("s_waitcnt vmcnt(0)")
    for t in range(4):
        I("v_lshlrev_b32 v%d, 16, v%d" % (F + 0, XA + t))
        I("v_and_b32 v%d, 0xffff0000, v%d" % (F + 1, XA + t))
        I("v_sub_f32 v%d, v%d, v12" % (F + 0, F + 0))
        I("v_sub_f32 v%d, v%d, v12" % (F + 1, F + 1))
        I("v_cvt_pk_bf16_f32 v%d, v%d, v%d" % (F + 2, F + 0, F + 1))
        I("v_lshlrev_b32 v%d, 16, v%d" % (F + 0, F + 2))
        I("v_and_b32 v%d, 0xffff0000, v%d" % (F + 1, F + 2))
        I("v_mul_f32 v%d, v%d, v14" % (F + 0, F + 0))
        I("v_mul_f32 v%d, v%d, v14" % (F + 1, F + 1))
        I("v_cvt_pk_bf16_f32 v%d, v%d, v%d" % (A + t, F + 0, F + 1))
    Bc = 32
    def perm4(src, dst):
        for c in range(4):
            for jj in range(4):
                I("v_perm_b32 v%d, v%d, v%d, s%d" % (dst + 4 * c + jj, src + 2 * (2 * jj + 1) + (c >> 1), src + 2 * (2 * jj) + (c >> 1), 64 + (c & 1)))
    astamp(16)
    perm4(R, Bc)
    D = 80
    for c in range(4):
        I("v_mfma_f32_16x16x32_bf16 v[%d:%d], v[%d:%d], v[%d:%d], 0" % (D + 4 * c, D + 4 * c + 3, A, A + 3, Bc + 4 * c, Bc + 4 * c + 3))
    I("s_waitcnt lgkmcnt(0)")
    I("s_mul_i32 s35, s35, 0x9E3779B1")
    I("s_add_u32 s35, s35, 0x7F4A7C15")
    G = 96
    for c in range(4):
        I("v_mov_b32 v%d, s35" % (G + 2 * c + 1))
    for c in range(4):
        d = D + 4 * c
        I("v_add_f32_dpp v%d, v%d, v%d row_ror:8 row_mask:0xf bank_mask:0x3" % (G + 2 * c, d + 2, d + 0))
        I("v_add_f32_dpp v%d, v%d, v%d row_ror:8 row_mask:0xf bank_mask:0xc" % (G + 2 * c, d + 1, d + 3))
    I("v_lshlrev_b32 v3, 13, v3")
    I("v_lshl_add_u32 v3, v6, 5, v3")
    I("s_lshl_b32 s52, s29, 4")
    I("s_add_u32 s53, s52, s30")
    I("s_lshl_b32 s53, s53, 10")
    I("s_lshl_b32 s54, s34, 8")
    I("s_add_u32 s53, s53, s54")
    I("s_add_u32 s53, s53, %d" % QG)
    I("s_mov_b64 exec, 0xffff")
    I("buffer_store_dwordx4 v[%d:%d], v3, s[36:39], s53 offen sc1" % (G, G + 3))
    I("buffer_store_dwordx4 v[%d:%d], v3, s[36:39], s53 offen offset:16 sc1" % (G + 4, G + 7))
    I("s_mov_b64 exec, -1")
    astamp(2)
    I("v_lshrrev_b32 v3, 3, v0")
    I("v_lshlrev_b32 v3, 10, v3")
    I("v_and_b32 v4, 7, v0")
    I("v_lshl_add_u32 v3, v4, 5, v3")
    I("s_lshl_b32 s53, s31, 3")
    I("s_add_u32 s53, s53, s52")
    I("s_lshl_b32 s53, s53, 10")
    I("s_add_u32 s53, s53, s54")
    I("s_add_u32 s53, s53, %d" % QG)
    Q2 = 104
    I("s_cmp_lg_u32 s34, 0")
    I("s_cbranch_scc1 L_noinit")
    I("v_lshlrev_b32 v8, 4, v0")
    I("v_mov_b32 v16, -1"); I("v_mov_b32 v17, -1"); I("v_mov_b32 v18, -1"); I("v_mov_b32 v19, -1")
    I("s_lshl_b32 s56, s2, 10")
    I("s_add_u32 s56, s56, %d" % OREC)
    I("buffer_store_dwordx4 v[16:19], v8, s[36:39], s56 offen sc1")
    I("v_lshlrev_b32 v9, 3, v0")
    I("s_lshl_b32 s56, s2, 9")
    I("s_add_u32 s56, s56, %d" % YREC)
    I("buffer_store_dwordx2 v[16:17], v9, s[36:39], s56 offen sc1")
    I("s_lshl_b32 s56, s69, 12")
    I("s_add_u32 s56, s56, %d" % GUREC)
    I("s_lshl_b32 s57, s66, 12")
    I("s_add_u32 s57, s57, %d" % DREC)
    I("s_cmp_eq_u32 s67, 2")
    I("s_cselect_b32 s56, s57, s56")
    I("s_cmp_eq_u32 s67, 0")
    I("s_cselect_b32 s56, %d, s56" % WSREC)
    for i in range(4):
        I("buffer_store_dwordx4 v[16:19], v8, s[36:39], s56 offen offset:%d sc1" % (1024 * i))
    I("v_lshlrev_b32 v9, 2, v0")
    I("v_mov_b32 v20, 0")
    I("s_lshl_b32 s57, s33, 8")
    I("s_add_u32 s57, s57, %d" % CNT)
    I("s_cmp_eq_u32 s32, 0")
    I("s_cselect_b32 s56, s57, %d" % WSREC)
    I("s_mov_b64 exec, 1")
    I("buffer_store_dword v20, v9, s[36:39], s56 offen sc1")
    I("s_mov_b64 exec, -1")
    k.label("L_noinit")
    PS = [128 + 8 * i for i in range(NPOLL)]
    def qissue(i):
        I("buffer_load_dwordx4 v[%d:%d], v3, s[36:39], s53 offen sc1" % (PS[i], PS[i] + 3))
        I("buffer_load_dwordx4 v[%d:%d], v3, s[36:39], s53 offen offset:16 sc1" % (PS[i] + 4, PS[i] + 7))
    for i in range(NPOLL):
        sl = SL0 if i == 0 else SL1
        if sl: I("s_sleep %d" % sl)
        qissue(i)
    I("s_mov_b32 s55, %d" % SPIN)
    k.label("L_qpoll")
    for i in range(NPOLL):
        P_ = PS[i]
        I("s_waitcnt vmcnt(%d)" % (2 * (NPOLL - 1)))
        I("v_xor_b32 v5, s35, v%d" % (P_ + 1))
        I("v_xor_b32 v6, s35, v%d" % (P_ + 3))
        I("v_xor_b32 v7, s35, v%d" % (P_ + 5))
        I("v_xor_b32 v8, s35, v%d" % (P_ + 7))
        I("v_or3_b32 v5, v5, v6, v7")
        I("v_or_b32 v5, v5, v8")
        I("v_cmp_ne_u32 vcc, 0, v5")
        I("s_cbranch_vccz L_qok%d" % i)
        qissue(i)
    I("s_sub_u32 s55, s55, 1")
    I("s_cbranch_scc0 L_qpoll")
    for i in range(NPOLL - 1, -1, -1):
        k.label("L_qok%d" % i)
        for t in (0, 2, 4, 6):
            I("v_mov_b32 v%d, v%d" % (Q2 + t, PS[i] + t))
        if i: I("s_branch L_qok")
    k.label("L_qok")
    if prio != prio2: I("s_setprio %d" % prio2)
    I("s_cmp_lg_u32 s34, 0")
    I("s_cbranch_scc1 L_nocnt")
    I("s_mov_b32 s48, s24"); I("s_mov_b32 s49, s25"); I("s_mov_b32 s50, 256"); I("s_mov_b32 s51, 0x20000")
    I("v_mov_b32 v16, 1")
    I("s_mov_b64 exec, 1")
    I("buffer_atomic_add v16, off, s[48:51], 0 sc1")
    I("s_mov_b64 exec, -1")
    k.label("L_nocnt")
    I("v_permlane32_swap_b32 v%d, v%d" % (Q2 + 0, Q2 + 4))
    I("v_permlane32_swap_b32 v%d, v%d" % (Q2 + 2, Q2 + 6))
    I("v_add_f32 v%d, v%d, v%d" % (Q2 + 0, Q2 + 0, Q2 + 4))
    I("v_add_f32 v%d, v%d, v%d" % (Q2 + 2, Q2 + 2, Q2 + 6))
    I("v_permlane16_swap_b32 v%d, v%d" % (Q2 + 0, Q2 + 2))
    I("v_add_f32 v%d, v%d, v%d" % (Q2 + 0, Q2 + 0, Q2 + 2))
    I("v_add_f32_dpp v%d, v%d, v%d row_ror:8 row_mask:0xf bank_mask:0xf" % (Q2 + 1, Q2 + 0, Q2 + 0))
    I("v_cvt_pk_bf16_f32 v%d, v%d, v%d" % (Q2 + 1, Q2 + 1, Q2 + 1))
    I("v_lshl_add_u32 v4, v4, 2, v%d" % g)
    I("s_lshl_b32 s54, s34, 5")
    I("v_add_u32 v4, s54, v4")
    I("v_lshlrev_b32 v4, 1, v4")
    I("ds_write_b16 v4, v%d offset:%d" % (Q2 + 1, L_Q))
    I("s_waitcnt lgkmcnt(0)")
    astamp(3)
    I("s_barrier")

    acollect()
    I("s_cmp_lg_u32 s34, 0")
    I("s_cbranch_scc1 L_noflag")
    I("s_mov_b32 s55, %d" % SPIN)
    I("v_mov_b32 v17, %d" % L_GO)
    k.label("L_gospin")
    I("ds_read_b32 v16, v17")
    I("s_waitcnt lgkmcnt(0)")
    I("v_readfirstlane_b32 s52, v16")
    I("s_cmp_eq_u32 s52, 1")
    I("s_cbranch_scc1 L_gook")
    I("s_sleep 16")
    I("s_sub_u32 s55, s55, 1")
    I("s_cbranch_scc0 L_gospin")
    k.label("L_gook")
    I("s_mov_b32 s55, %d" % SPIN)
    k.label("L_cntpoll")
    I("buffer_load_dword v16, off, s[48:51], 0 sc1")
    I("s_waitcnt vmcnt(0)")
    I("v_readfirstlane_b32 s52, v16")
    I("s_cmp_ge_u32 s52, 256")
    I("s_cbranch_scc1 L_cntok")
    I("s_sleep 64")
    I("s_sub_u32 s55, s55, 1")
    I("s_cbranch_scc0 L_cntpoll")
    k.label("L_cntok")
    I("v_mov_b32 v16, 1")
    I("v_mov_b32 v17, %d" % L_FLAG)
    I("ds_write_b32 v17, v16")
    I("s_waitcnt lgkmcnt(0)")
    k.label("L_noflag")
    stamp(13)

    BW = 112
    I("s_mov_b32 s44, s12"); I("s_mov_b32 s45, s13"); I("s_mov_b32 s46, 0x400000"); I("s_mov_b32 s47, 0x20000")
    I("v_lshlrev_b32 v3, 13, v%d" % g)
    I("v_lshl_add_u32 v3, v%d, 3, v3" % n)
    I("s_lshl_b32 s52, s29, 17")
    I("s_lshl_b32 s53, s34, 15")
    I("s_add_u32 s52, s52, s53")
    I("s_lshl_b32 s53, s30, 7")
    I("s_add_u32 s52, s52, s53")
    I("s_add_u32 s53, s52, 4096")
    for j in range(8):
        I("buffer_load_dwordx2 v[%d:%d], v3, s[44:47], s%d offen offset:%d%s" % (R + 2 * j, R + 2 * j + 1, 52 + (j >> 2), 1024 * (j & 3), " nt" if nto else ""))
    W = 128
    XU = 80
    vPA, vHW, vRA, vSO, vSS, vDA, vONE, vF4, vF2, vOUT, vHBW = 64, 65, 66, 67, 68, 69, 70, 71, 72, 73, 74
    NTF = " nt" if ntf else ""
    I("v_and_b32 v5, 7, v0")
    I("v_bfe_u32 v4, v0, 3, 1")
    I("v_lshl_add_u32 v%d, v5, 2, v%d" % (vHW, g))
    I("v_lshl_add_u32 v%d, v4, 5, v%d" % (vHW, vHW))
    I("v_lshlrev_b32 v%d, 2, v%d" % (vHW, vHW))
    I("v_bfe_u32 v8, v%d, 2, 1" % n)
    I("s_add_u32 s72, s26, %d" % DREC)
    I("s_addc_u32 s73, s27, 0")
    I("s_mov_b32 s74, %d" % (43 * 4096))
    I("s_mov_b32 s75, 0x20000")
    I("s_cmp_eq_u32 s67, 1")
    I("s_cbranch_scc1 L_pf_gu")
    I("s_cmp_eq_u32 s67, 2")
    I("s_cbranch_scc1 L_pf_down")
    I("s_waitcnt vmcnt(0)")
    perm4(R, BW)
    I("s_branch L_pf_done")

    k.label("L_pf_gu")
    I("s_cmp_lt_u32 s34, 2")
    I("s_cselect_b32 s40, s16, s18"); I("s_cselect_b32 s41, s17, s19"); I("s_mov_b32 s42, %d" % (512 * 2752)); I("s_mov_b32 s43, 0x20000")
    I("s_mov_b32 s52, 2752*8")
    I("v_mul_lo_u32 v6, v%d, s52" % g)
    I("v_lshl_add_u32 v6, v%d, 3, v6" % n)
    I("s_mul_i32 s52, s68, %d" % (32 * 2752))
    I("s_lshl_b32 s53, s66, 8")
    I("s_add_u32 s52, s52, s53")
    I("s_and_b32 s54, s34, 1")
    I("s_lshl_b32 s53, s54, 7")
    I("s_add_u32 s52, s52, s53")
    for jj in range(8):
        if not nopref: I("buffer_load_dwordx2 v[%d:%d], v6, s[40:43], s52 offen offset:%d%s" % (W + 16 + 2 * jj, W + 17 + 2 * jj, 2752 * (jj & 1), NTF))
        if jj & 1 and jj < 7: I("s_add_u32 s52, s52, 5504")
    I("s_mov_b32 s44, s4"); I("s_mov_b32 s45, s5"); I("s_mov_b32 s46, 2048"); I("s_mov_b32 s47, 0x20000")
    I("v_lshlrev_b32 v9, 10, v8")
    I("v_lshl_add_u32 v9, v%d, 4, v9" % g)
    I("s_lshl_b32 s52, s68, 6")
    I("buffer_load_dwordx4 v[88:91], v9, s[44:47], s52 offen")
    I("v_lshrrev_b32 v9, 3, v0")
    I("v_lshlrev_b32 v9, 12, v9")
    I("v_lshl_add_u32 v%d, v5, 4, v9" % vPA)
    I("s_lshl_b32 s56, s34, 15")
    I("s_lshr_b32 s52, s68, 1")
    I("s_lshl_b32 s52, s52, 9")
    I("s_add_u32 s56, s56, s52")
    I("s_and_b32 s52, s68, 1")
    I("s_lshl_b32 s52, s52, 7")
    I("s_add_u32 s56, s56, s52")
    I("s_add_u32 s56, s56, %d" % YREC)
    I("v_lshlrev_b32 v9, 7, v8")
    I("v_lshl_add_u32 v%d, v%d, 5, v9" % (vRA, g))
    I("v_lshlrev_b32 v9, 9, v%d" % g)
    I("v_lshl_add_u32 v%d, v%d, 4, v9" % (vSO, n))
    I("s_lshl_b32 s58, s69, 12")
    I("s_add_u32 s58, s58, %d" % GUREC)
    I("s_lshr_b32 s52, s34, 1")
    I("s_mul_i32 s52, s52, 1536")
    I("s_add_u32 s57, s58, s52")
    I("s_lshl_b32 s52, s54, 8")
    I("s_add_u32 s57, s57, s52")
    I("v_lshrrev_b32 v9, 1, v%d" % g)
    I("v_lshl_add_u32 v9, v9, 1, v8")
    I("v_lshlrev_b32 v9, 2, v9")
    I("v_add_u32 v%d, 3072, v9" % vSS)
    I("v_mov_b32 v%d, 0x3f803f80" % vONE)
    I("s_mov_b32 s70, 0x0f000f00"); I("s_mov_b32 s71, 0x0f000f00")
    I("v_lshlrev_b32 v9, 14, v%d" % g)
    I("v_lshl_add_u32 v9, v4, 11, v9")
    I("v_lshl_add_u32 v%d, v5, 4, v9" % vDA)
    I("s_lshl_b32 s59, s34, 12")
    I("s_lshl_b32 s52, s68, 7")
    I("s_add_u32 s59, s59, s52")
    I("s_add_u32 s60, s59, 65536")
    I("s_add_u32 s61, s59, 131072")
    I("v_lshlrev_b32 v%d, 2, v0" % vF4)
    I("v_lshlrev_b32 v%d, 1, v0" % vF2)
    I("v_lshrrev_b32 v9, 5, v0")
    I("v_lshlrev_b32 v9, 10, v9")
    I("v_and_b32 v10, 31, v0")
    I("v_lshl_add_u32 v%d, v10, 1, v9" % vOUT)
    I("v_lshlrev_b32 v9, 6, v8")
    I("v_lshl_add_u32 v%d, v%d, 4, v9" % (vHBW, g))
    I("s_lshl_b32 s62, s68, 6")
    I("s_mov_b32 s44, s22"); I("s_mov_b32 s45, s23"); I("s_mov_b32 s46, 2048"); I("s_mov_b32 s47, 0x20000")
    I("s_waitcnt vmcnt(%d)" % (1 if nopref else 9))
    perm4(R, BW)
    I("s_waitcnt vmcnt(1)")
    perm4(W + 16, W)
    I("s_waitcnt vmcnt(0)")
    for t in range(4):
        I("v_lshlrev_b32 v%d, 16, v%d" % (XU + 2 * t, 88 + t))
        I("v_and_b32 v%d, 0xffff0000, v%d" % (XU + 2 * t + 1, 88 + t))
    I("s_branch L_pf_done")

    k.label("L_pf_down")
    I("s_mov_b32 s40, s20"); I("s_mov_b32 s41, s21"); I("s_mov_b32 s42, %d" % (1376 * 1024)); I("s_mov_b32 s43, 0x20000")
    I("v_lshlrev_b32 v6, 13, v%d" % g)
    I("v_lshl_add_u32 v6, v%d, 4, v6" % n)
    I("s_lshl_b32 s52, s66, 15")
    I("s_lshl_b32 s53, s34, 8")
    I("s_add_u32 s52, s52, s53")
    I("s_add_u32 s53, s52, 4096")
    for i in range(8):
        if not nopref: I("buffer_load_dwordx4 v[%d:%d], v6, s[40:43], s%d offen offset:%d%s" % (W + 32 + 4 * i, W + 35 + 4 * i, 52 + (i >> 2), 1024 * (i & 3), NTF))
    I("v_lshlrev_b32 v9, 12, v%d" % g)
    I("v_add_u32 v%d, 3072, v9" % vSS)
    I("s_mov_b32 s52, 1536")
    I("v_mul_lo_u32 v10, v4, s52")
    I("v_add_u32 v9, v9, v10")
    I("v_lshl_add_u32 v%d, v5, 4, v9" % vPA)
    I("s_lshr_b32 s52, s66, 2")
    I("s_lshl_b32 s52, s52, 4")
    I("s_lshl_b32 s53, s34, 2")
    I("s_add_u32 s52, s52, s53")
    I("s_lshl_b32 s52, s52, 12")
    I("s_add_u32 s58, s52, %d" % GUREC)
    I("s_and_b32 s52, s66, 3")
    I("s_lshl_b32 s52, s52, 7")
    I("s_add_u32 s56, s58, s52")
    I("v_and_b32 v10, 31, v0")
    I("v_lshlrev_b32 v10, 2, v10")
    I("v_lshrrev_b32 v11, 5, v0")
    I("v_lshl_add_u32 v9, v11, 8, v10")
    I("v_add_u32 v%d, %d, v9" % (vRA, L_GACC))
    I("v_add_u32 v%d, %d, v10" % (vDA, L_GACC + 512))
    I("v_lshlrev_b32 v9, 2, v11")
    I("v_add_u32 v%d, %d, v9" % (vONE, L_SACC))
    I("v_lshlrev_b32 v%d, 2, v%d" % (vHBW, g))
    I("s_lshl_b32 s52, s34, 7")
    I("s_add_u32 s52, s52, %d" % L_HH)
    I("v_lshlrev_b32 v9, 1, v0")
    I("v_add_u32 v%d, s52, v9" % vF4)
    I("v_lshlrev_b32 v9, 6, v8")
    I("v_lshl_add_u32 v9, v%d, 4, v9" % g)
    I("v_add_u32 v%d, s52, v9" % vF2)
    I("v_and_b32 v9, 1, v%d" % g)
    I("v_lshlrev_b32 v9, 11, v9")
    I("v_lshl_add_u32 v9, v%d, 5, v9" % n)
    I("v_lshrrev_b32 v10, 1, v%d" % g)
    I("v_lshl_add_u32 v%d, v10, 4, v9" % vSO)
    I("s_lshl_b32 s57, s66, 12")
    I("s_lshl_b32 s52, s34, 9")
    I("s_add_u32 s57, s57, s52")
    I("s_add_u32 s57, s57, %d" % DREC)
    I("s_waitcnt vmcnt(%d)" % (0 if nopref else 8))
    perm4(R, BW)
    I("s_waitcnt vmcnt(0)")
    for c in range(8):
        for jj in range(4):
            I("v_perm_b32 v%d, v%d, v%d, s%d" % (W + 4 * c + jj, W + 32 + 4 * (2 * jj + 1) + (c >> 1), W + 32 + 4 * (2 * jj) + (c >> 1), 64 + (c & 1)))
    k.label("L_pf_done")
    stamp(4)

    I("v_bfe_u32 v6, v%d, 1, 1" % n)
    I("v_and_b32 v7, 1, v%d" % n)
    I("v_lshl_or_b32 v6, v7, 1, v6")
    I("v_and_b32 v7, 4, v%d" % n)
    I("v_or_b32 v6, v6, v7")
    I("v_lshlrev_b32 v6, 10, v6")
    I("v_lshl_add_u32 v7, v%d, 5, v6" % g)
    I("s_lshl_b32 s52, s29, 13")
    I("s_add_u32 s52, s52, %d" % OREC)
    I("s_lshl_b32 s53, s34, 7")
    I("s_add_u32 s53, s53, s52")
    I("s_mov_b32 s55, %d" % SPIN)
    I("s_waitcnt lgkmcnt(0)")
    I("s_barrier")
    stamp(5)
    O = 16
    k.label("L_opoll")
    I("buffer_load_dwordx4 v[%d:%d], v7, s[36:39], s53 offen sc1" % (O, O + 3))
    I("buffer_load_dwordx4 v[%d:%d], v7, s[36:39], s53 offen offset:16 sc1" % (O + 4, O + 7))
    I("buffer_load_dwordx2 v[%d:%d], v6, s[36:39], s52 offen offset:512 sc1" % (O + 8, O + 9))
    I("s_waitcnt vmcnt(0)")
    I("v_max3_u32 v12, v%d, v%d, v%d" % (O, O + 1, O + 2))
    I("v_max3_u32 v13, v%d, v%d, v%d" % (O + 3, O + 4, O + 5))
    I("v_max3_u32 v12, v12, v%d, v%d" % (O + 6, O + 7))
    I("v_max3_u32 v13, v13, v%d, v%d" % (O + 8, O + 9))
    I("v_max_u32 v12, v12, v13")
    I("v_cmp_eq_u32 vcc, -1, v12")
    I("s_sub_u32 s55, s55, 1")
    I("s_cbranch_scc1 L_opoll_out")
    I("s_mov_b64 exec, vcc")
    I("s_cbranch_execnz L_opoll")
    k.label("L_opoll_out")
    I("s_mov_b64 exec, -1")
    stamp(6)
    m_, l_ = O + 8, O + 9
    I("v_max_f32_dpp v12, v%d, v%d quad_perm:[2,3,0,1] row_mask:0xf bank_mask:0xf" % (m_, m_))
    I("v_max_f32_dpp v13, v12, v12 row_ror:4 row_mask:0xf bank_mask:0xf")
    I("v_sub_f32 v12, v%d, v13" % m_)
    I("v_exp_f32 v12, v12")
    I("v_mul_f32 v13, v12, v%d" % l_)
    I("v_add_f32_dpp v14, v13, v13 quad_perm:[2,3,0,1] row_mask:0xf bank_mask:0xf")
    I("v_add_f32_dpp v13, v14, v14 row_ror:4 row_mask:0xf bank_mask:0xf")
    I("v_rcp_f32 v13, v13")
    I("v_mul_f32 v12, v12, v13")
    for t in range(8): I("v_mul_f32 v%d, v%d, v12" % (O + t, O + t))
    for t in range(8): I("v_add_f32_dpp v%d, v%d, v%d quad_perm:[2,3,0,1] row_mask:0xf bank_mask:0xf" % (32 + t, O + t, O + t))
    for t in range(8): I("v_add_f32_dpp v%d, v%d, v%d row_ror:4 row_mask:0xf bank_mask:0xf" % (O + t, 32 + t, 32 + t))
    for t in range(4): I("v_cvt_pk_bf16_f32 v%d, v%d, v%d" % (28 + t, O + 2 * t, O + 2 * t + 1))
    D = 32
    for c in range(4):
        I("v_mfma_f32_16x16x32_bf16 v[%d:%d], v[28:31], v[%d:%d], 0" % (D + 4 * c, D + 4 * c + 3, BW + 4 * c, BW + 4 * c + 3))
    I("s_lshl_b32 s52, s34, 9")
    I("s_add_u32 s52, s52, %d" % L_YP)
    I("v_lshlrev_b32 v13, 4, v%d" % n)
    I("v_add_u32 v13, s52, v13")
    I("s_mov_b64 exec, 0xffff")
    for bb in range(2):
        I("ds_write2_b32 v13, v%d, v%d offset0:%d offset1:%d" % (D + bb, D + 4 + bb, 64 * bb, 64 * bb + 1))
        I("ds_write2_b32 v13, v%d, v%d offset0:%d offset1:%d" % (D + 8 + bb, D + 12 + bb, 64 * bb + 2, 64 * bb + 3))
    I("s_mov_b64 exec, -1")
    I("s_waitcnt lgkmcnt(0)")
    I("s_barrier")
    stamp(7)
    I("s_cmp_lg_u32 s34, 0")
    I("s_cbranch_scc1 L_noY")
    I("v_lshlrev_b32 v12, 4, v0")
    I("s_mov_b64 exec, 0xffffffff")
    for w in range(4):
        I("ds_read_b128 v[%d:%d], v12 offset:%d" % (16 + 4 * w, 19 + 4 * w, L_YP + 512 * w))
    I("s_lshl_b32 s52, s2, 9")
    I("s_add_u32 s52, s52, %d" % YREC)
    I("s_mov_b32 s63, 0x%x" % SENT_CLAMP)
    I("s_waitcnt lgkmcnt(2)")
    for t in range(4): I("v_add_f32 v%d, v%d, v%d" % (16 + t, 16 + t, 20 + t))
    I("s_waitcnt lgkmcnt(0)")
    for t in range(4): I("v_add_f32 v%d, v%d, v%d" % (24 + t, 24 + t, 28 + t))
    for t in range(4): I("v_add_f32 v%d, v%d, v%d" % (16 + t, 16 + t, 24 + t))
    for t in range(4): I("v_min_u32 v%d, s63, v%d" % (16 + t, 16 + t))
    I("buffer_store_dwordx4 v[16:19], v12, s[36:39], s52 offen sc1")
    I("s_mov_b64 exec, -1")
    stamp(8)
    k.label("L_noY")
    I("s_cmp_eq_u32 s67, 1")
    I("s_cbranch_scc1 L_gu")
    I("s_cmp_eq_u32 s67, 2")
    I("s_cbranch_scc1 L_down")
    I("s_branch L_hend")

    def poll(name, loads, regs, execmask):
        I("s_mov_b32 s55, %d" % SPIN)
        if execmask is not None: I("s_mov_b64 exec, %s" % execmask)
        k.label(name)
        for l in loads: I(l)
        I("s_waitcnt vmcnt(0)")
        regs = list(regs)
        acc = [12, 13]
        first = [True, True]
        idx = 0
        while regs:
            a_ = acc[idx & 1]
            if first[idx & 1]:
                if len(regs) >= 3:
                    I("v_max3_u32 v%d, v%d, v%d, v%d" % (a_, regs[0], regs[1], regs[2])); regs = regs[3:]
                    first[idx & 1] = False
                else:
                    a_ = acc[0]
                    I("v_max_u32 v%d, v%d, v%d" % (a_, a_, regs[0])); regs = regs[1:]
            else:
                if len(regs) >= 2:
                    I("v_max3_u32 v%d, v%d, v%d, v%d" % (a_, a_, regs[0], regs[1])); regs = regs[2:]
                else:
                    I("v_max_u32 v%d, v%d, v%d" % (a_, a_, regs[0])); regs = regs[1:]
            idx += 1
        if not first[1]: I("v_max_u32 v12, v12, v13")
        I("v_cmp_eq_u32 vcc, -1, v12")
        I("s_sub_u32 s55, s55, 1")
        I("s_cbranch_scc1 %s_out" % name)
        I("s_mov_b64 exec, vcc")
        I("s_cbranch_execnz %s" % name)
        k.label(name + "_out")
        I("s_mov_b64 exec, -1")
    def red4(r):
        I("v_permlane16_swap_b32 v%d, v%d" % (r, r + 1))
        I("v_permlane16_swap_b32 v%d, v%d" % (r + 2, r + 3))
        I("v_add_f32 v%d, v%d, v%d" % (r, r, r + 1))
        I("v_add_f32 v%d, v%d, v%d" % (r + 2, r + 2, r + 3))
        I("v_permlane32_swap_b32 v%d, v%d" % (r, r + 2))
        I("v_add_f32 v%d, v%d, v%d" % (r, r, r + 2))
    P = 96

    k.label("L_gu")
    poll("L_ypoll",
         ["buffer_load_dwordx4 v[%d:%d], v%d, s[36:39], s56 offen offset:%d sc1" % (P + 4 * t, P + 4 * t + 3, vPA, 256 * t) for t in range(2)],
         range(P, P + 8), None)
    stamp(18)
    U = 32
    for i in range(4):
        I("v_add_f32_dpp v%d, v%d, v%d row_ror:8 row_mask:0xf bank_mask:0x3" % (U + i, P + i, P + i))
        I("v_add_f32_dpp v%d, v%d, v%d row_ror:8 row_mask:0xf bank_mask:0xc" % (U + i, P + 4 + i, P + 4 + i))
    red4(U)
    I("ds_add_f32 v%d, v%d offset:%d" % (vHW, U, L_HACC))
    I("s_mov_b32 s63, 0x%x" % SENT_CLAMP)
    I("s_waitcnt lgkmcnt(0)")
    I("s_barrier")
    I("ds_read_b128 v[40:43], v%d offset:%d" % (vRA, L_HACC))
    I("ds_read_b128 v[44:47], v%d offset:%d" % (vRA, L_HACC + 16))
    A_ = 48; HP = 52
    for half in range(2):
        I("s_waitcnt lgkmcnt(%d)" % (1 - half))
        for p in (2 * half, 2 * half + 1):
            I("v_cvt_pk_bf16_f32 v%d, v%d, v%d" % (32 + p, 40 + 2 * p, 41 + 2 * p))
        for p in (2 * half, 2 * half + 1):
            I("v_lshlrev_b32 v%d, 16, v%d" % (40 + 2 * p, 32 + p))
            I("v_and_b32 v%d, 0xffff0000, v%d" % (41 + 2 * p, 32 + p))
        for p in (2 * half, 2 * half + 1):
            I("v_add_f32 v%d, v%d, v%d" % (40 + 2 * p, 40 + 2 * p, XU + 2 * p))
            I("v_add_f32 v%d, v%d, v%d" % (41 + 2 * p, 41 + 2 * p, XU + 2 * p + 1))
        for p in (2 * half, 2 * half + 1):
            I("v_cvt_pk_bf16_f32 v%d, v%d, v%d" % (HP + p, 40 + 2 * p, 41 + 2 * p))
        for p in (2 * half, 2 * half + 1):
            I("v_cndmask_b32 v%d, v%d, v%d, s[70:71]" % (A_ + p, HP + p, vONE))
    D = 16
    for c in range(4):
        I("v_mfma_f32_16x16x32_bf16 v[%d:%d], v[%d:%d], v[%d:%d], 0" % (D + 4 * c, D + 4 * c + 3, A_, A_ + 3, W + 4 * c, W + 4 * c + 3))
    I("v_mfma_f32_16x16x32_bf16 v[56:59], v[%d:%d], v[%d:%d], 0" % (A_, A_ + 3, A_, A_ + 3))
    for c in range(4):
        I("v_min_u32 v%d, s63, v%d" % (60 + c, D + 4 * c))
    I("s_mov_b32 s76, -1"); I("s_mov_b32 s77, 0xffff")
    I("s_mov_b64 exec, s[76:77]")
    I("buffer_store_dwordx4 v[60:63], v%d, s[36:39], s57 offen sc1" % vSO)
    I("s_mov_b64 exec, -1")
    I("s_cmp_lg_u32 s34, 0")
    I("s_cbranch_scc1 L_gu_nostat")
    I("v_min_u32 v56, s63, v56")
    I("s_mov_b32 s76, 0x00100001"); I("s_mov_b32 s77, 0x11")
    I("s_mov_b64 exec, s[76:77]")
    I("buffer_store_dword v56, v%d, s[36:39], s58 offen sc1" % vSS)
    I("s_mov_b32 s76, 0x00110011"); I("s_mov_b32 s77, 0x00110011")
    I("s_mov_b64 exec, s[76:77]")
    I("ds_write_b128 v%d, v[%d:%d] offset:%d" % (vHBW, HP, HP + 3, L_HB))
    I("s_mov_b64 exec, -1")
    k.label("L_gu_nostat")
    stamp(17)
    I("s_cmp_lg_u32 s66, 0")
    I("s_cbranch_scc1 L_hend")
    poll("L_dpoll",
         ["buffer_load_dwordx4 v[%d:%d], v%d, s[72:75], s%d offen sc1" % (P + 4 * i, P + 4 * i + 3, vDA, 59 + i) for i in range(3)],
         range(P, P + 12), None)
    stamp(9)
    for i in range(4):
        I("v_add_f32 v%d, v%d, v%d" % (32 + i, P + i, P + 4 + i))
    for i in range(4):
        I("v_add_f32 v%d, v%d, v%d" % (32 + i, 32 + i, P + 8 + i))
    red4(32)
    I("ds_add_f32 v%d, v32 offset:%d" % (vHW, L_FACC))
    I("s_waitcnt lgkmcnt(0)")
    I("s_barrier")
    stamp(10)
    I("s_cmp_lg_u32 s34, 0")
    I("s_cbranch_scc1 L_hend")
    I("ds_read_b32 v32, v%d offset:%d" % (vF4, L_FACC))
    I("ds_read_u16 v40, v%d offset:%d" % (vF2, L_HB))
    I("s_waitcnt lgkmcnt(0)")
    rnd(32, 32)
    I("v_lshlrev_b32 v35, 16, v40")
    I("v_add_f32 v32, v32, v35")
    I("v_mov_b32_dpp v33, v32 quad_perm:[1,0,3,2] row_mask:0xf bank_mask:0xf")
    I("v_cvt_pk_bf16_f32 v34, v32, v33")
    I("s_mov_b32 s70, 0x55555555"); I("s_mov_b32 s71, 0x55555555")
    I("s_mov_b64 exec, s[70:71]")
    I("buffer_store_dword v34, v%d, s[44:47], s62 offen" % vOUT)
    I("s_cmp_lg_u32 s68, 0")
    I("s_cbranch_scc1 L_noepoch")
    I("v_mov_b32 v35, s35")
    I("s_mov_b64 exec, 1")
    I("buffer_store_dword v35, off, s[36:39], 0 offset:%d sc1" % EPOCH)
    k.label("L_noepoch")
    I("s_mov_b64 exec, -1")
    I("s_branch L_hend")

    k.label("L_down")
    poll("L_gpoll",
         ["buffer_load_dwordx4 v[%d:%d], v%d, s[36:39], s56 offen offset:%d sc1" % (P + 4 * r, P + 4 * r + 3, vPA, 512 * r) for r in range(3)] +
         ["buffer_load_dwordx4 v[%d:%d], v%d, s[36:39], s58 offen sc1" % (P + 12, P + 15, vSS)],
         range(P, P + 16), None)
    stamp(9)
    for r in range(4): red4(P + 4 * r)
    for r in range(3):
        I("ds_add_f32 v%d, v%d offset:%d" % (vHW, P + 4 * r, L_GACC + 256 * r))
    I("s_mov_b32 s76, 0x00010001"); I("s_mov_b32 s77, 0x00010001")
    I("s_mov_b64 exec, s[76:77]")
    I("ds_add_f32 v%d, v%d offset:%d" % (vHBW, P + 12, L_SACC))
    I("s_mov_b64 exec, -1")
    I("s_mov_b32 s63, 0x%x" % SENT_CLAMP)
    I("s_waitcnt lgkmcnt(0)")
    I("s_barrier")
    stamp(10)
    I("ds_read2_b32 v[48:49], v%d offset0:0 offset1:2" % vONE)
    I("ds_read2_b32 v[32:33], v%d offset0:0 offset1:32" % vRA)
    I("ds_read2_b32 v[34:35], v%d offset0:0 offset1:32" % vDA)
    I("s_waitcnt lgkmcnt(2)")
    I("v_mul_f32 v49, 0x3b000000, v49")
    I("v_mul_f32 v48, 0x3b000000, v48")
    I("v_fma_f32 v48, -v49, v49, v48")
    I("v_max_f32 v48, 0, v48")
    rnd(48, 48)
    I("v_add_f32 v48, 0x3727c5ac, v48")
    rnd(48, 48)
    I("v_sqrt_f32 v48, v48")
    rnd(48, 48)
    I("v_rcp_f32 v48, v48")
    rnd(49, 49)
    I("s_waitcnt lgkmcnt(0)")
    for t in range(2):
        I("v_fma_f32 v%d, -v49, v%d, v%d" % (32 + t, 34 + t, 32 + t))
    for t in range(2):
        I("v_mul_f32 v%d, v%d, v48" % (32 + t, 32 + t))
    I("v_cvt_pk_bf16_f32 v36, v32, v33")
    I("v_lshlrev_b32 v32, 16, v36")
    I("v_and_b32 v33, 0xffff0000, v36")
    I("v_max_f32 v32, 0, v32")
    I("v_mul_f32 v32, v32, v33")
    I("v_cvt_pk_bf16_f32 v36, v32, v32")
    I("ds_write_b16 v%d, v36" % vF4)
    I("ds_read_b128 v[48:51], v%d" % vF2)
    I("s_waitcnt lgkmcnt(0)")
    D = 16
    for c in range(8):
        I("v_mfma_f32_16x16x32_bf16 v[%d:%d], v[48:51], v[%d:%d], 0" % (D + 4 * c, D + 4 * c + 3, W + 4 * c, W + 4 * c + 3))
    I("s_mov_b32 s76, 0"); I("s_mov_b32 s77, -1")
    for c in range(4):
        I("v_cndmask_b32 v%d, v%d, v%d, s[76:77]" % (60 + c, D + 4 * c, D + 16 + 4 * c))
    for c in range(4):
        I("v_min_u32 v%d, s63, v%d" % (60 + c, 60 + c))
    I("buffer_store_dwordx4 v[60:63], v%d, s[36:39], s57 offen sc1" % vSO)
    stamp(19)
    k.label("L_hend")
    stamp(11)
    stamp_flush(True)
    k.label("L_end")
    I("s_endpgm")

    body = k.finish()
    for p in k.problems: print("HAZARD-EDGE:", p)
    nv = 256
    out = [HEADER.rstrip()]
    out.append("; Override launch geometry by editing the next line (default: block=256,")
    out.append("; @launch grid=(256,1,1) block=(512,1,1) lds=%d" % LDS_BYTES)
    out.append('.amdgcn_target "amdgcn-amd-amdhsa--gfx950"')
    out.append(".text")
    out.append(".globl %s" % KNAME)
    out.append(".p2align 8")
    out.append(".type %s,@function" % KNAME)
    out.append("%s:" % KNAME)
    for ln in body:
        out.append(ln if ln.endswith(":") else "    " + ln)
    out.append('.section .rodata,"a"')
    out.append(".p2align 6")
    out.append(".amdhsa_kernel %s" % KNAME)
    out.append("  .amdhsa_next_free_vgpr %d" % nv)
    out.append("  .amdhsa_next_free_sgpr 102")
    out.append("  .amdhsa_accum_offset %d" % nv)
    out.append("  .amdhsa_group_segment_fixed_size 0")
    out.append("  .amdhsa_kernarg_size 96")
    out.append("  .amdhsa_user_sgpr_count 2")
    out.append("  .amdhsa_user_sgpr_kernarg_segment_ptr 1")
    out.append("  .amdhsa_system_sgpr_workgroup_id_x 1")
    out.append(".end_amdhsa_kernel")
    open(path, "w").write("\n".join(out) + "\n")

if __name__ == "__main__":
    import argparse
    ap = argparse.ArgumentParser()
    ap.add_argument("out")
    ap.add_argument("--stamps", action="store_true")
    ap.add_argument("--NS", type=int, default=26)
    ap.add_argument("--NPARK", type=int, default=2)
    ap.add_argument("--nopref", action="store_true")
    ap.add_argument("--nocomp", action="store_true")
    ap.add_argument("--prio", type=int, default=0)
    ap.add_argument("--prio2", type=int, default=0)
    ap.add_argument("--xf", type=int, default=None)
    ap.add_argument("--wqcap", type=int, default=32)
    ap.add_argument("--XG", type=int, default=6)
    ap.add_argument("--warm", action="store_true")
    ap.add_argument("--contig", action="store_true")
    ap.add_argument("--SL0", type=int, default=22)
    ap.add_argument("--SL1", type=int, default=22)
    ap.add_argument("--NPOLL", type=int, default=3)
    ap.add_argument("--warmnt", action="store_true")
    ap.add_argument("--CAP", type=int, default=34)
    ap.add_argument("--b0", action="store_true")
    ap.add_argument("--rot", type=int, default=0)
    ap.add_argument("--tl", action="store_true")
    ap.add_argument("--RD", type=int, default=2)
    ap.add_argument("--xp", default=None)
    ap.add_argument("--dbgst", action="store_true")
    ap.add_argument("--ntq", action="store_true")
    ap.add_argument("--nto", action="store_true")
    ap.add_argument("--ntf", action="store_true")
    ap.add_argument("--pp", type=int, default=1)
    ap.add_argument("--ppo", type=int, default=1)
    ap.add_argument("--psl", type=int, default=6)
    ap.add_argument("--hrep", type=int, default=1)
    ap.add_argument("--pdiff", action="store_true")
    ap.add_argument("--tlbw", type=int, default=0)
    ap.add_argument("--hhrep", type=int, default=1)
    a = ap.parse_args()
    gen(a.out, contig=a.contig, NS=a.NS, CAP=a.CAP, stamps=a.stamps, b0=a.b0, NPARK=a.NPARK, nopref=a.nopref, nocomp=a.nocomp, prio=a.prio, prio2=a.prio2, xf=a.xf, wqcap=a.wqcap, XG=a.XG, warm=a.warm, warmnt=a.warmnt, SL0=a.SL0, SL1=a.SL1, NPOLL=a.NPOLL, rot=a.rot, tl=a.tl, RD=a.RD, ntq=a.ntq, nto=a.nto, ntf=a.ntf, xp=a.xp, dbgst=a.dbgst, pp=a.pp, psl=a.psl, ppo=a.ppo, hrep=a.hrep, hhrep=a.hhrep, pdiff=a.pdiff, tlbw=a.tlbw)
```
